```python
import torch

def _softmax(x, axis=-1):
    return torch.softmax(x, dim=axis)
def _gelu(x):
    return torch.nn.functional.gelu(x, approximate="tanh")
def _silu(x):
    return torch.nn.functional.silu(x)
def _sigmoid(x):
    return torch.sigmoid(x)
def _layernorm(x, axis=-1, eps=1e-5):
    m = x.mean(dim=axis, keepdim=True)
    v = x.var(dim=axis, keepdim=True, unbiased=False)
    return (x - m) / torch.sqrt(v + eps)
def _scatter_add(tgt, idx, src, axis=0):
    return tgt.clone().index_add_(axis, idx, src)
def _segment_sum(src, seg, n):
    out = torch.zeros((n,) + src.shape[1:], dtype=src.dtype)
    return out.index_add_(0, seg, src)
def _pad(x, pw):
    flat = tuple(v for pair in reversed(pw) for v in pair)
    return torch.nn.functional.pad(x, flat)

kernel_name = 'concat_heads__gqa_block_cached__compressed_kv_cla__decode'

def setup_inputs():

    _w = (lambda a: (lambda t: t.to(torch.bfloat16) if t.is_floating_point() else t)(torch.as_tensor(a)))
    def _A_setup():
        B, Sq, D = 2, 1, 512
        Hq, Hkv, Sk, Dh = 32, 8, 8192, 128
        assert Hq % Hkv == 0, (Hq, Hkv)
        return {
            "x": _w((lambda *s: torch.randn(*s, dtype=torch.bfloat16) * 1.6)(B, Sq, D)),
            "k_cache": _w((lambda *s: torch.randn(*s, dtype=torch.bfloat16) * 1.6)(B, Hkv, Sk, Dh)),
            "v_cache": _w((lambda *s: torch.randn(*s, dtype=torch.bfloat16) * 0.05)(B, Hkv, Sk, Dh)),
            "wq": _w((lambda *s: torch.randn(*s, dtype=torch.bfloat16) * 1.6)(D, Hq * Dh) * (D ** -0.5)),
            "wo": _w((lambda *s: torch.randn(*s, dtype=torch.bfloat16) * 0.05)(Hq * Dh, D) * ((Hq * Dh) ** -0.5)),
        }
    _A_in = _A_setup()

    def _B_setup():
        B, H, Sq, Sk, D, M = 2, 32, 1, 8192, 128, 512
        Dc = 4 * D
        return {
            "x": _w((lambda *s: torch.randn(*s, dtype=torch.bfloat16) * 3.2)(B, Sq, M)),
            "c_kv": _w((lambda *s: torch.randn(*s, dtype=torch.bfloat16) * 0.1)(B, Sk, Dc)),
            "w_q": _w((lambda *s: torch.randn(*s, dtype=torch.bfloat16) * 6.4)(M, H, D) * (M ** -0.5)),
            "w_uk": _w((lambda *s: torch.randn(*s, dtype=torch.bfloat16) * 6.4)(Dc, H, D) * (Dc ** -0.5)),
            "w_uv": _w((lambda *s: torch.randn(*s, dtype=torch.bfloat16) * 0.1)(Dc, H, D) * (Dc ** -0.5)),
            "w_o": _w((lambda *s: torch.randn(*s, dtype=torch.bfloat16) * 0.1)(H, D, M) * ((H * D) ** -0.5)),
        }
    _B_in = _B_setup()

    return {
        "A_x": _A_in["x"],
        "A_k_cache": _A_in["k_cache"],
        "A_v_cache": _A_in["v_cache"],
        "A_wq": _A_in["wq"],
        "A_wo": _A_in["wo"],
        "B_x": _B_in["x"],
        "B_c_kv": _B_in["c_kv"],
        "B_w_q": _B_in["w_q"],
        "B_w_uk": _B_in["w_uk"],
        "B_w_uv": _B_in["w_uv"],
        "B_w_o": _B_in["w_o"],
    }

def reference(A_x, A_k_cache, A_v_cache, A_wq, A_wo, B_x, B_c_kv, B_w_q, B_w_uk, B_w_uv, B_w_o):
    def _A_ref(x, k_cache, v_cache, wq, wo):
        B, Sq, D = x.shape
        Hq, Dh = 32, 128
        Hkv = k_cache.shape[1]
        rep = Hq // Hkv
        q = (lambda x, *d: x.permute(*d))((x @ wq).reshape(B, Sq, Hq, Dh), 0, 2, 1, 3)
        k = (lambda x, n, axis: torch.repeat_interleave(x, n, dim=axis))(k_cache, rep, axis=1)
        v = (lambda x, n, axis: torch.repeat_interleave(x, n, dim=axis))(v_cache, rep, axis=1)
        scores = torch.einsum("bhqd,bhkd->bhqk", q, k) * (Dh ** -0.5)
        p = _softmax(scores, axis=-1)
        o = torch.einsum("bhqk,bhkd->bhqd", p, v)
        return (lambda x, *d: x.permute(*d))(o, 0, 2, 1, 3).reshape(B, Sq, Hq * Dh) @ wo

    def _B_ref(x, c_kv, w_q, w_uk, w_uv, w_o):
        B, Sq, M = x.shape[0], x.shape[1], x.shape[2]
        Sk = c_kv.shape[1]
        H, D = w_q.shape[1], w_q.shape[2]
        q = torch.einsum("bqm,mhd->bhqd", x, w_q)
        k = torch.einsum("bkc,chd->bhkd", c_kv, w_uk)
        v = torch.einsum("bkc,chd->bhkd", c_kv, w_uv)
        scores = torch.einsum("bhqd,bhkd->bhqk", q, k) * (D ** -0.5)
        off = Sk - Sq
        qi = torch.arange(Sq)[:, None]
        kj = torch.arange(Sk)[None, :]
        cmask = kj <= (qi + off)
        scores = torch.where(cmask[None, None], scores, -1e9)
        p = _softmax(scores, axis=-1)
        ctx = torch.einsum("bhqk,bhkd->bhqd", p, v)
        return torch.einsum("bhqd,hdm->bqm", ctx, w_o)

    a = _A_ref(A_x, A_k_cache, A_v_cache, A_wq, A_wo)
    b = _B_ref(B_x, B_c_kv, B_w_q, B_w_uk, B_w_uv, B_w_o)
    return torch.concatenate([a, b], axis=-1)
```

```python
import re

TRANS = ("v_exp_", "v_log_", "v_rcp_", "v_rsq_", "v_sqrt_", "v_sin_", "v_cos_")

def split_ops(s):
    out, depth, cur = [], 0, ""
    for ch in s:
        if ch == "[": depth += 1
        if ch == "]": depth -= 1
        if ch == "," and depth == 0:
            out.append(cur.strip()); cur = ""
        else:
            cur += ch
    if cur.strip(): out.append(cur.strip())
    return out

def regs_of(op):
    tok = op.split()[0] if op.split() else ""
    tok = tok.lstrip("-")
    if tok.startswith("abs(") or tok.startswith("|"):
        tok = tok.replace("abs(", "").replace(")", "").replace("|", "")
    m = re.fullmatch(r"([vsa])(\d+)", tok)
    if m: return {(m.group(1), int(m.group(2)))}
    m = re.fullmatch(r"([vsa])\[(\d+):(\d+)\]", tok)
    if m: return {(m.group(1), i) for i in range(int(m.group(2)), int(m.group(3)) + 1)}
    if tok in ("vcc", "vcc_lo", "vcc_hi"): return {("s", "vcc")}
    if tok in ("exec", "exec_lo", "exec_hi"): return {("s", "exec")}
    if tok == "m0": return {("s", "m0")}
    return set()

class Ins:
    def __init__(self, text):
        self.text = text
        parts = text.split(None, 1)
        self.mn = mn = parts[0]
        ops = split_ops(parts[1]) if len(parts) > 1 else []
        self.ops = ops
        R = [regs_of(o) for o in ops]
        self.kind = "other"; self.w = set(); self.r = set()
        self.passes = 0; self.srcC = set(); self.srcAB = set()
        self.dpp = "_dpp" in mn; self.trans = mn.startswith(TRANS)
        self.wide_store = set(); self.ldsdma = False
        allr = lambda k: set().union(*R[k:]) if R[k:] else set()
        if mn.startswith("v_mfma"):
            self.kind = "mfma"; self.w = R[0]; self.srcAB = R[1] | R[2]; self.srcC = R[3]; self.r = allr(1)
            self.passes = 8 if "32x32x16" in mn else 4
            assert "32x32x16" in mn or "16x16x32" in mn, mn
        elif mn.startswith("v_"):
            self.kind = "valu"
            if "permlane" in mn and "swap" in mn:
                self.w = R[0] | R[1]; self.r = R[0] | R[1]
            elif mn.startswith(("v_add_co", "v_sub_co", "v_addc_co", "v_subb_co")):
                self.w = R[0] | R[1]; self.r = allr(2)
            else:
                self.w = R[0]; self.r = allr(1)
                if mn.startswith(("v_fmac", "v_pk_fmac", "v_dot2c")) or self.dpp: self.r |= R[0]
            if mn.startswith("v_cmpx"): self.w |= {("s", "exec")}
        elif mn.startswith(("buffer_", "global_")):
            self.kind = "vmem"
            if " lds" in text and "load" in mn:
                self.ldsdma = True; self.r = allr(0) | {("s", "m0")}
            elif "load" in mn:
                self.w = R[0]; self.r = allr(1)
            else:
                self.r = allr(0)
                if "x3" in mn or "x4" in mn:
                    self.wide_store = R[0] if mn.startswith("buffer_") else R[1]
        elif mn.startswith("ds_"):
            self.kind = "ds"
            if mn.startswith(("ds_read", "ds_bpermute", "ds_permute", "ds_swizzle")):
                self.w = R[0]; self.r = allr(1)
            else:
                self.r = allr(0)
        elif mn.startswith("s_"):
            self.kind = "salu"
            if mn.startswith(("s_cmp", "s_cbranch", "s_branch", "s_waitcnt", "s_barrier", "s_nop", "s_sleep", "s_endpgm", "s_setprio", "s_bitcmp")):
                self.r = allr(0)
            else:
                self.w = R[0] if R else set(); self.r = allr(1)
                if "saveexec" in mn: self.w |= {("s", "exec")}
        self.ws = 1
        if mn == "s_nop": self.ws = int(ops[0], 0) + 1

def vonly(s): return {x for x in s if x[0] in ("v", "a")}
def sonly(s): return {x for x in s if x[0] == "s"}

def hazard(P, X):
    need = 0
    def upd(n):
        nonlocal need
        need = max(need, n)
    if P.kind == "valu":
        pv = vonly(P.w); ps = sonly(P.w)
        if pv:
            if X.kind == "mfma" and pv & X.r: upd(2)
            if X.kind == "valu":
                if X.dpp and pv & X.r: upd(2)
                if "permlane" in X.mn and pv & X.r: upd(2)
                if X.mn.startswith(("v_readlane", "v_readfirstlane")) and pv & X.r: upd(1)
                if P.trans and not X.trans and pv & X.r: upd(1)
            if P.trans and X.kind in ("vmem", "ds") and pv & X.r: upd(1)
        if ps:
            if X.kind in ("valu", "mfma") and ps & X.r:
                upd(4 if X.mn.startswith(("v_readlane", "v_writelane")) else 2)
            if X.kind == "vmem" and ps & X.r: upd(5)
            if ("s", "exec") in ps:
                if X.kind == "valu" and X.dpp: upd(5)
                if X.kind == "mfma" or "permlane" in X.mn or X.mn.startswith(("v_readlane", "v_readfirstlane", "v_writelane")): upd(4)
    if P.kind == "mfma":
        big = {4: 8, 8: 12}[P.passes]
        if X.kind == "mfma":
            if P.w & X.srcAB: upd(big)
            if P.w & X.srcC:
                if P.w == X.srcC and P.passes == X.passes: pass
                else: upd({4: 6, 8: 10}[P.passes])
            if P.w & X.w and not (P.w == X.srcC): upd(big)
        elif X.kind == "valu":
            if P.w & (X.r | X.w): upd(big)
            if P.srcC & X.w: upd({4: 3, 8: 7}[P.passes])
        elif X.kind in ("vmem", "ds"):
            if P.w & (X.r | X.w): upd(big)
    if P.wide_store and X.kind in ("valu", "mfma", "ds", "vmem") and P.wide_store & X.w: upd(2)
    if P.kind == "salu" and ("s", "m0") in P.w and X.ldsdma: upd(1)
    return need

class Asm:
    def __init__(self):
        self.lines = []; self.hist = []; self.pos = 0; self.nlabel = 0
    def raw(self, t): self.lines.append(t)
    def c(self, t): self.lines.append("    ; " + t)
    def label(self, name): self.lines.append(name + ":")
    def newlabel(self, base="L"):
        self.nlabel += 1
        return f"{base}_{self.nlabel}"
    def flush(self):
        self.hist = []
    def __call__(self, text):
        for t in text.split("\n"):
            t = t.split(";")[0].strip()
            if not t: continue
            if t.endswith(":"):
                self.label(t[:-1]); continue
            X = Ins(t)
            need = 0
            for (p, P) in self.hist:
                h = hazard(P, X)
                if h:
                    dist = self.pos - p - 1
                    need = max(need, h - dist)
            while need > 0:
                n = min(need, 16)
                self.lines.append(f"    s_nop {n-1}"); self.pos += n; need -= n
            self.lines.append("    " + t)
            self.hist.append((self.pos + X.ws - 1, X))
            self.pos += X.ws
            self.hist = [(p, P) for (p, P) in self.hist if self.pos - p <= 24]
    def text(self): return "\n".join(self.lines) + "\n"
```

```python
import sys, math, struct
sys.path.insert(0, "gen")
from asmlib import Asm

NAME = "concat_heads__gqa_block_cached__compressed_kv_cla__decode"
EPOCH_A, EPOCH_B = 0x0, 0x80
QA, QABS, MLA, MLB = 0x10000, 0x20000, 0x40000, 0x50000
OPART, OUTP_A, OUTP_B, LAT = 0x100000, 0x200000, 0x240000, 0x400000
STAMP = 0x1000000
WS_BYTES = 0x10000000
SPIN = 20000
DPP = "row_mask:0xf bank_mask:0xf"
SCALE = math.log2(math.e) / math.sqrt(128.0)
SCALE_BITS = struct.unpack("<I", struct.pack("<f", SCALE))[0]

P_AX, P_K, P_V, P_WQ, P_WO, P_BX, P_C, P_BWQ, P_UK, P_UV, P_BWO, P_OUT, P_DBG, P_WS = 4, 6, 8, 10, 12, 14, 16, 18, 20, 22, 24, 26, 28, 30
WS, R1, R2, R3, R4, R5 = "s[32:35]", "s[36:39]", "s[40:43]", "s[44:47]", "s[48:51]", "s[52:55]"
TAG, CNT, SELLO, SELHI, SC = "s56", "s57", "s58", "s59", "s71"

def vr(a, n=4): return f"v[{a}:{a+n-1}]"

class Gen:
    def __init__(self, stamps=False, kdepth=0, opts=None):
        self.a = Asm(); self.stamps = stamps; self.kdepth = kdepth; self.nst = 0
        self.o = opts or {}
    def srd(self, name, ptr, nbytes):
        b = int(name[2:].split(":")[0])
        self.a(f"s_mov_b32 s{b}, s{ptr}\ns_mov_b32 s{b+1}, s{ptr+1}\ns_mov_b32 s{b+2}, {hex(nbytes)}\ns_mov_b32 s{b+3}, 0x20000")
    def stamp(self, i):
        if self.stamps:
            self.a(f"s_memrealtime s[{72+2*i}:{73+2*i}]\ns_waitcnt lgkmcnt(0)")
    def stamp_init(self):
        if self.stamps:
            for i in range(2, 24): self.a(f"s_mov_b32 s{72+i}, 0")
    def finish(self):
        a = self.a
        if self.stamps:
            self.stamp(11)
            a("s_mov_b64 exec, 1")
            a(f"s_lshl_b32 s60, s2, 4\ns_add_u32 s60, s60, s3\ns_lshl_b32 s60, s60, 7\ns_add_u32 s60, s60, {STAMP}")
            a("v_mov_b32 v1, 0")
            for q in range(6):
                for i in range(4): a(f"v_mov_b32 v{4+i}, s{72+4*q+i}")
                a(f"buffer_store_dwordx4 v[4:7], v1, {WS}, s60 offen offset:{16*q}")
                a("s_nop 1")
            a("s_waitcnt vmcnt(0)")
        a("s_endpgm")
    def epoch(self, off):
        self.a(f"s_load_dword {TAG}, s[{P_WS}:{P_WS+1}], {off}")
    def tag_ready(self):
        self.a(f"s_waitcnt lgkmcnt(0)\ns_mul_i32 {TAG}, {TAG}, 1664525\ns_add_u32 {TAG}, {TAG}, 1013904223")
    def poll(self, loads, tagregs, first_wait=None, issued=False):
        a = self.a
        L, OK, CHK = a.newlabel("L_poll"), a.newlabel("L_ok"), a.newlabel("L_chk")
        a(f"s_mov_b32 {CNT}, {SPIN}")
        if issued:
            a(f"s_waitcnt vmcnt({first_wait})\ns_branch {CHK}")
        a.label(L)
        for l in loads: a(l)
        a("s_waitcnt vmcnt(0)")
        a.label(CHK)
        for i, t in enumerate(tagregs):
            if i == 0: a(f"v_cmp_ne_u32 vcc, {TAG}, v{t}")
            else: a(f"v_cmp_ne_u32 s[62:63], {TAG}, v{t}\ns_or_b64 vcc, vcc, s[62:63]")
        a(f"s_cmp_eq_u64 vcc, 0\ns_cbranch_scc1 {OK}")
        a(f"s_sleep 2\ns_sub_u32 {CNT}, {CNT}, 1\ns_cmp_lg_u32 {CNT}, 0\ns_cbranch_scc1 {L}")
        a.label(OK)
    def perm_frag(self, W, ep, dst):
        for t in range(4):
            self.a(f"v_perm_b32 v{dst+t}, v{W+4*(2*t+1)+(ep>>1)}, v{W+4*(2*t)+(ep>>1)}, {SELHI if ep&1 else SELLO}")
    def diag_sum(self, lst):
        a = self.a
        for D, dst in lst: a(f"v_mov_b32_dpp v{dst}, v{D} quad_perm:[0,0,0,0] {DPP}")
        for i in (1, 2, 3):
            for D, dst in lst: a(f"v_add_f32_dpp v{dst}, v{D+i}, v{dst} quad_perm:[{i},{i},{i},{i}] {DPP}")
    def xreduce(self, op, x, t, steps=(32, 16)):
        for s in steps:
            self.a(f"v_mov_b32 v{t}, v{x}\nv_permlane{s}_swap_b32 v{x}, v{t}\n{op} v{x}, v{x}, v{t}")

    WSTR = 1056
    RED = 135168; VEC = 151552; WSCR = 156160; QV = 157184
    def vblock_addr(self):
        a = self.a
        a("v_lshrrev_b32 v1, 4, v0\nv_lshlrev_b32 v1, 16, v1\nv_and_b32 v2, 15, v0\nv_lshl_add_u32 v1, v2, 4, v1")
        a("s_lshl_b32 s60, s3, 18\ns_lshl_b32 s64, s61, 8\ns_add_u32 s60, s60, s64")
    def vblock_load(self, srd, W):
        for e in range(8):
            self.a(f"s_add_u32 s64, s60, {e*8192}\nbuffer_load_dwordx4 {vr(W+4*e)}, v1, {srd}, s64 offen nt")
    def partial_write_and_reduce(self, D):
        a = self.a
        a(f"v_and_b32 v3, 15, v0\nv_lshlrev_b32 v3, 3, v3\ns_lshl_b32 s64, s3, 10\ns_add_u32 s64, s64, {self.RED}\nv_add_u32 v3, s64, v3")
        a("s_mov_b64 exec, 0xffff")
        for e in range(8): a(f"ds_write_b64 v3, {vr(D+4*e,2)} offset:{e*128}")
        a("s_mov_b64 exec, -1\ns_waitcnt lgkmcnt(0)\ns_barrier")
        skip = a.newlabel("L_skipred")
        a(f"s_cmp_ge_u32 s3, 2\ns_cbranch_scc1 {skip}")
        a(f"v_lshrrev_b32 v3, 4, v0\nv_lshlrev_b32 v3, 8, v3\nv_and_b32 v4, 15, v0\nv_lshl_add_u32 v3, v4, 3, v3")
        a(f"s_lshl_b32 s64, s3, 2\ns_add_u32 s64, s64, {self.RED}\nv_add_u32 v3, s64, v3\nv_add_u32 v4, 128, v3")
        for i in range(8):
            a(f"ds_read2st64_b32 {vr(D+2*i,2)}, v3 offset0:{8*i} offset1:{8*i+4}")
            a(f"ds_read2st64_b32 {vr(D+16+2*i,2)}, v4 offset0:{8*i} offset1:{8*i+4}")
        a("s_waitcnt lgkmcnt(0)")
        for base in (D, D + 16):
            for st in (8, 4, 2):
                for i in range(0, st, 2): a(f"v_pk_add_f32 {vr(base+i,2)}, {vr(base+i,2)}, {vr(base+i+st,2)}")
            a(f"v_add_f32 v{base}, v{base}, v{base+1}")
        a(f"v_cvt_pk_bf16_f32 v8, v{D}, v{D+16}")
        return skip
    def front1(self, xs, ws_, W, D, T, nyoung):
        a = self.a
        a(f"s_waitcnt vmcnt({nyoung})")
        for ep in range(8):
            t = T + 4 * (ep % 4)
            self.perm_frag(W, ep, t)
            a(f"v_mfma_f32_16x16x32_bf16 {vr(D+4*ep)}, v[8:11], {vr(t)}, 0")
        return self.partial_write_and_reduce(D)
    def x_load(self, srd):
        a = self.a
        a("v_and_b32 v2, 1, v0\nv_lshlrev_b32 v2, 10, v2\nv_lshrrev_b32 v3, 4, v0\nv_lshl_add_u32 v2, v3, 4, v2\ns_lshl_b32 s64, s3, 6")
        a(f"buffer_load_dwordx4 v[8:11], v2, {srd}, s64 offen")
    def wo_dma(self, srd):
        a = self.a
        a(f"v_lshlrev_b32 v5, 4, v0\ns_lshl_b32 s65, s61, 17\ns_lshl_b32 s64, s3, 13\ns_add_u32 s65, s65, s64\ns_mul_i32 s66, s3, {8*self.WSTR}")
        for r in range(8):
            a(f"s_add_u32 m0, s66, {r*self.WSTR}\ns_add_u32 s64, s65, {r*1024}\nbuffer_load_dwordx4 v5, {srd}, s64 offen nt lds")
    def wo_frags(self, WF):
        a = self.a
        a("v_lshrrev_b32 v5, 4, v0\nv_lshlrev_b32 v5, 3, v5\nv_bfe_u32 v6, v0, 2, 2\nv_add_u32 v5, v5, v6")
        a(f"v_mul_u32_u24 v5, {self.WSTR}, v5\nv_and_b32 v6, 3, v0\nv_lshl_add_u32 v5, v6, 3, v5\ns_lshl_b32 s64, s3, 6\nv_add_u32 v5, s64, v5")
        a(f"v_add_u32 v6, {64*self.WSTR}, v5")
        for ct in range(2):
            for ks in range(4):
                for t in range(2):
                    off = (32 * (ks & 1) + 4 * t) * self.WSTR + 32 * ct
                    a(f"ds_read_b64_tr_b16 {vr(WF+(ct*4+ks)*4+2*t,2)}, v{5+(ks>>1)} offset:{off}")
        a("s_waitcnt lgkmcnt(0)")
    def outp_store_addr(self, outp):
        a = self.a
        a("v_lshrrev_b32 v7, 5, v0\nv_lshlrev_b32 v7, 17, v7\nv_and_b32 v6, 31, v0\nv_lshl_add_u32 v7, v6, 3, v7")
        a(f"s_lshl_b32 s67, s3, 5\ns_add_u32 s67, s67, s61\ns_lshl_b32 s67, s67, 8\ns_add_u32 s67, s67, {outp}")
    def final_stage(self, outp, part, epoch_off):
        a = self.a
        end = a.newlabel("L_fin")
        a(f"s_cmp_lg_u32 s3, 0\ns_cbranch_scc1 {end}")
        self.srd(R1, P_OUT, 4096)
        a(f"v_lshlrev_b32 v1, 4, v0\ns_lshl_b32 s64, s61, 13\ns_add_u32 s64, s64, {outp}\ns_add_u32 s65, s64, 4096")
        loads = [f"buffer_load_dwordx4 {vr(32+4*i)}, v1, {WS}, s{64+(i>>2)} offen offset:{(i&3)*1024} sc1" for i in range(8)]
        a(f"s_lshr_b32 s66, s61, 4\ns_lshl_b32 s66, s66, 11\ns_and_b32 s67, s61, 15\ns_lshl_b32 s67, s67, 6\ns_add_u32 s66, s66, s67\ns_add_u32 s66, s66, {part*1024}")
        a("v_lshlrev_b32 v2, 2, v0")
        self.poll(loads, [32 + 4 * i + k for i in range(8) for k in (1, 3)])
        self.stamp(9)
        for st in (16, 8, 4):
            for i in range(0, st, 2): a(f"v_add_f32 v{32+i}, v{32+i}, v{32+i+st}")
        self.xreduce("v_add_f32", 32, 33)
        self.xreduce("v_add_f32", 34, 35)
        a("v_cvt_pk_bf16_f32 v32, v32, v34\ns_mov_b64 exec, 0xffff")
        a(f"buffer_store_dword v32, v2, {R1}, s66 offen")
        a(f"s_cmp_lg_u32 s61, 0\ns_cbranch_scc1 {end}")
        a(f"s_mov_b64 exec, 1\nv_mov_b32 v3, {TAG}\nv_mov_b32 v4, 0\nbuffer_store_dword v3, v4, {WS}, 0 offen offset:{epoch_off} sc1")
        a.label(end)
        a("s_mov_b64 exec, -1")

    def role_ahead(self):
        a = self.a; a.flush(); a.label("L_ahead")
        a("s_sub_u32 s61, s2, 32")
        self.vblock_addr()
        a("s_waitcnt lgkmcnt(0)")
        self.epoch(EPOCH_A)
        self.srd(R1, P_WQ, 4 << 20); self.srd(R2, P_AX, 2048); self.srd(R3, P_WO, 4 << 20); self.srd(WS, P_WS, WS_BYTES)
        self.vblock_load(R1, 32)
        self.x_load(R2)
        self.tag_ready()
        skip = self.front1(R2, R1, 32, 96, 12, 0)
        a("v_and_b32 v3, 15, v0\nv_lshlrev_b32 v3, 5, v3\nv_lshrrev_b32 v4, 4, v0\nv_lshl_add_u32 v3, v4, 3, v3")
        a(f"s_lshl_b32 s64, s3, 5\ns_add_u32 s64, s64, s61\ns_lshl_b32 s64, s64, 9\ns_add_u32 s64, s64, {QA}")
        a(f"v_mov_b32 v9, {TAG}\nbuffer_store_dwordx2 v[8:9], v3, {WS}, s64 offen sc1")
        a.label(skip)
        self.stamp(1)
        self.wo_dma(R3)
        a("s_waitcnt vmcnt(0)\ns_barrier")
        self.wo_frags(64)
        self.stamp(2)
        a(f"v_and_b32 v1, 15, v0\nv_lshlrev_b32 v1, 4, v1\ns_lshl_b32 s64, s61, 8\ns_add_u32 s64, s64, {MLA}")
        self.poll([f"buffer_load_dwordx4 v[8:11], v1, {WS}, s64 offen sc1"], [9, 11])
        self.stamp(3)
        a(f"v_max_f32_dpp v12, v8, v8 quad_perm:[1,0,3,2] {DPP}\nv_max_f32_dpp v12, v12, v12 quad_perm:[2,3,0,1] {DPP}\nv_max_f32_dpp v12, v12, v12 row_half_mirror {DPP}")
        a("v_sub_f32 v13, v8, v12\nv_exp_f32 v13, v13\nv_mul_f32 v14, v13, v10")
        a(f"v_add_f32_dpp v14, v14, v14 quad_perm:[1,0,3,2] {DPP}\nv_add_f32_dpp v14, v14, v14 quad_perm:[2,3,0,1] {DPP}\nv_add_f32_dpp v14, v14, v14 row_half_mirror {DPP}")
        a("v_rcp_f32 v14, v14\nv_mul_f32 v13, v13, v14")
        a(f"s_lshl_b32 s64, s3, 6\ns_add_u32 s64, s64, {self.WSCR}\nv_and_b32 v1, 15, v0\nv_lshlrev_b32 v1, 2, v1\nv_add_u32 v1, s64, v1\nds_write_b32 v1, v13")
        a("v_lshrrev_b32 v1, 4, v0\nv_lshlrev_b32 v1, 4, v1\nv_add_u32 v1, s64, v1\nds_read_b128 v[24:27], v1")
        self.outp_store_addr(OUTP_A)
        a(f"v_lshlrev_b32 v1, 3, v0\ns_lshl_b32 s64, s61, 13\ns_lshl_b32 s65, s3, 9\ns_add_u32 s64, s64, s65\ns_add_u32 s64, s64, {OPART}")
        a(f"s_mul_i32 s65, s3, 272\ns_add_u32 s65, s65, {self.VEC}\nv_lshlrev_b32 v2, 2, v0\nv_add_u32 v2, s65, v2")
        a(f"v_and_b32 v3, 15, v0\nv_mul_u32_u24 v3, 272, v3\nv_lshrrev_b32 v4, 4, v0\nv_lshl_add_u32 v3, v4, 4, v3\nv_add_u32 v3, {self.VEC}, v3")
        a(f"v_mov_b32 v29, {TAG}\ns_waitcnt lgkmcnt(0)")
        self.poll([f"buffer_load_dwordx2 v[8:9], v1, {WS}, s64 offen sc1"], [9])
        a("ds_write_b32 v2, v8\ns_waitcnt lgkmcnt(0)\ns_barrier")
        self.stamp(4)
        for ks in range(4): a(f"ds_read_b128 {vr(32+4*ks)}, v3 offset:{ks*64}")
        for ks in range(4):
            a(f"s_waitcnt lgkmcnt({3-ks})")
            for ct in range(2):
                a(f"v_mfma_f32_16x16x32_bf16 {vr(16+4*ct)}, {vr(32+4*ks)}, {vr(64+(ct*4+ks)*4)}, {'0' if ks==0 else vr(16+4*ct)}")
        for ct in range(2):
            a(f"v_mul_f32 v{12+ct}, v24, v{16+4*ct}")
            for r in range(1, 4): a(f"v_fmac_f32 v{12+ct}, v{24+r}, v{16+4*ct+r}")
        a("v_permlane16_swap_b32 v12, v13\nv_add_f32 v28, v12, v13")
        a(f"buffer_store_dwordx2 v[28:29], v7, {WS}, s67 offen sc1")
        self.stamp(5)
        self.final_stage(OUTP_A, 0, EPOCH_A)
        self.finish()

    def role_bhead(self):
        a = self.a; a.flush(); a.label("L_bhead")
        a("s_mov_b32 s61, s2")
        self.vblock_addr()
        a("v_bfe_u32 v7, v0, 2, 2\nv_lshlrev_b32 v7, 16, v7\nv_lshrrev_b32 v2, 4, v0\nv_lshl_add_u32 v7, v2, 6, v7\nv_and_b32 v2, 3, v0\nv_lshl_add_u32 v7, v2, 4, v7")
        a("s_waitcnt lgkmcnt(0)")
        self.epoch(EPOCH_B)
        self.srd(R1, P_BWQ, 4 << 20); self.srd(R2, P_BX, 2048); self.srd(R3, P_BWO, 4 << 20); self.srd(R4, P_UK, 4 << 20); self.srd(R5, P_UV, 4 << 20)
        self.srd(WS, P_WS, WS_BYTES)
        self.vblock_load(R1, 32)
        self.x_load(R2)
        for i in range(8):
            a(f"s_add_u32 s64, s60, {i*8192}\nbuffer_load_dwordx4 {vr(64+4*i)}, v7, {R4}, s64 offen nt")
        self.tag_ready()
        skip = self.front1(R2, R1, 32, 96, 12, 8)
        a(f"v_and_b32 v3, 15, v0\nv_lshlrev_b32 v3, 4, v3\nv_lshrrev_b32 v4, 4, v0\nv_lshl_add_u32 v3, v4, 2, v3\ns_lshl_b32 s64, s3, 8\ns_add_u32 s64, s64, {self.QV}\nv_add_u32 v3, s64, v3")
        a("ds_write_b32 v3, v8\ns_waitcnt lgkmcnt(0)")
        a.label(skip)
        a("s_barrier")
        self.stamp(1)
        a(f"v_bfe_u32 v3, v0, 2, 1\nv_lshlrev_b32 v3, 8, v3\nv_lshrrev_b32 v4, 4, v0\nv_lshl_add_u32 v3, v4, 6, v3\nv_and_b32 v4, 3, v0\nv_lshl_add_u32 v3, v4, 4, v3")
        a(f"v_add_u32 v3, {self.QV}, v3\nds_read_b128 v[8:11], v3")
        a("v_bfe_u32 v4, v0, 2, 1\nv_lshlrev_b32 v4, 16, v4\nv_lshrrev_b32 v5, 4, v0\nv_lshl_add_u32 v4, v5, 9, v4\nv_and_b32 v5, 1, v0\nv_lshl_add_u32 v4, v5, 4, v4")
        a(f"s_and_b32 s64, s61, 16\ns_add_u32 s64, s64, s3\ns_lshl_b32 s64, s64, 11\ns_and_b32 s65, s61, 15\ns_lshl_b32 s65, s65, 5\ns_add_u32 s64, s64, s65\ns_add_u32 s64, s64, {QABS}")
        a("v_cmp_eq_u32 vcc, 1, v5")
        a("s_waitcnt vmcnt(0) lgkmcnt(0)")
        for i in range(8): a(f"v_mfma_f32_16x16x32_bf16 {vr(64+4*i)}, {vr(64+4*i)}, v[8:11], 0")
        for g in range(2): self.diag_sum([(64 + 4 * i, 12 + i) for i in range(4*g, 4*g+4)])
        for i in range(4): a(f"v_cvt_pk_bf16_f32 v{20+i}, v{12+2*i}, v{13+2*i}")
        a(f"v_cndmask_b32 v24, v20, v22, vcc\nv_mov_b32 v25, {TAG}\nv_cndmask_b32 v26, v21, v23, vcc\nv_mov_b32 v27, {TAG}")
        a(f"s_mov_b32 exec_lo, 0x00330033\ns_mov_b32 exec_hi, 0x00330033\nbuffer_store_dwordx4 v[24:27], v4, {WS}, s64 offen sc1\ns_mov_b64 exec, -1")
        self.stamp(2)
        self.vblock_load(R5, 32)
        self.wo_dma(R3)
        a("s_waitcnt vmcnt(8)")
        for ep in range(8): self.perm_frag(32, ep, 64 + 4 * ep)
        a("s_waitcnt vmcnt(0)\ns_barrier")
        self.wo_frags(96)
        a("s_barrier")
        self.stamp(3)
        self.outp_store_addr(OUTP_B)
        a(f"v_lshlrev_b32 v1, 4, v0\ns_lshl_b32 s64, s61, 10\ns_add_u32 s64, s64, {MLB}")
        a(f"s_lshr_b32 s65, s3, 3\ns_lshl_b32 s65, s65, 5\ns_add_u32 s65, s65, s61\ns_lshl_b32 s65, s65, 5\ns_and_b32 s66, s3, 7\ns_lshl_b32 s66, s66, 2\ns_add_u32 s65, s65, s66\ns_lshl_b32 s65, s65, 10\ns_add_u32 s65, s65, {LAT}")
        self.poll([f"buffer_load_dwordx4 v[8:11], v1, {WS}, s64 offen sc1"], [9, 11])
        for i in range(4): a(f"buffer_load_dwordx4 {vr(32+4*i)}, v1, {WS}, s65 offen offset:{i*1024} sc1")
        self.stamp(4)
        for op, x, src in (("v_max_f32", 12, 8),):
            a(f"{op}_dpp v{x}, v{src}, v{src} quad_perm:[1,0,3,2] {DPP}\n{op}_dpp v{x}, v{x}, v{x} quad_perm:[2,3,0,1] {DPP}\n{op}_dpp v{x}, v{x}, v{x} row_half_mirror {DPP}\n{op}_dpp v{x}, v{x}, v{x} row_mirror {DPP}")
            self.xreduce(op, x, 15, steps=(16,))
        a("v_sub_f32 v13, v8, v12\nv_exp_f32 v13, v13\nv_mul_f32 v14, v13, v10")
        op, x = "v_add_f32", 14
        a(f"{op}_dpp v{x}, v{x}, v{x} quad_perm:[1,0,3,2] {DPP}\n{op}_dpp v{x}, v{x}, v{x} quad_perm:[2,3,0,1] {DPP}\n{op}_dpp v{x}, v{x}, v{x} row_half_mirror {DPP}\n{op}_dpp v{x}, v{x}, v{x} row_mirror {DPP}")
        self.xreduce(op, x, 15, steps=(16,))
        a("v_rcp_f32 v14, v14\nv_mul_f32 v13, v13, v14")
        a("s_lshl_b32 s66, s3, 2")
        sw = ["s62", "s63", "s68", "s69"]
        for i in range(4):
            a(f"s_add_u32 s70, s66, {i}\nv_readlane_b32 {sw[i]}, v13, s70")
        for i in range(4):
            a(f"s_waitcnt vmcnt({3-i})")
            for d in range(4):
                a(f"v_lshlrev_b32 v24, 16, v{32+4*i+d}\nv_and_b32 v25, 0xffff0000, v{32+4*i+d}")
                if i == 0: a(f"v_mul_f32 v{16+2*d}, {sw[i]}, v24\nv_mul_f32 v{17+2*d}, {sw[i]}, v25")
                else: a(f"v_fmac_f32 v{16+2*d}, {sw[i]}, v24\nv_fmac_f32 v{17+2*d}, {sw[i]}, v25")
        a("v_lshlrev_b32 v2, 5, v0\ns_lshl_b32 s64, s3, 11\nv_add_u32 v2, s64, v2")
        a("ds_write_b128 v2, v[16:19]\nds_write_b128 v2, v[20:23] offset:16\ns_waitcnt lgkmcnt(0)\ns_barrier")
        self.stamp(5)
        LATV = 32768
        skip = a.newlabel("L_skipl")
        a(f"s_cmp_ge_u32 s3, 8\ns_cbranch_scc1 {skip}")
        a("s_lshr_b32 s64, s3, 2\ns_lshl_b32 s64, s64, 14\ns_and_b32 s65, s3, 3\ns_lshl_b32 s65, s65, 9\ns_add_u32 s64, s64, s65\nv_lshlrev_b32 v2, 3, v0\nv_add_u32 v2, s64, v2")
        for i in range(8): a(f"ds_read_b64 {vr(32+2*i,2)}, v2 offset:{i*2048}")
        a(f"s_lshl_b32 s64, s3, 8\ns_add_u32 s64, s64, {LATV}\nv_lshlrev_b32 v3, 2, v0\nv_add_u32 v3, s64, v3")
        a("s_waitcnt lgkmcnt(0)")
        for st in (8, 4, 2):
            for i in range(0, st, 2): a(f"v_pk_add_f32 {vr(32+i,2)}, {vr(32+i,2)}, {vr(32+i+st,2)}")
        a("v_cvt_pk_bf16_f32 v32, v32, v33\nds_write_b32 v3, v32\ns_waitcnt lgkmcnt(0)")
        a.label(skip)
        a("s_barrier")
        a(f"v_and_b32 v2, 1, v0\nv_lshlrev_b32 v2, 10, v2\nv_lshrrev_b32 v3, 4, v0\nv_lshl_add_u32 v2, v3, 4, v2\ns_lshl_b32 s64, s3, 6\ns_add_u32 s64, s64, {LATV}\nv_add_u32 v2, s64, v2")
        a("ds_read_b128 v[8:11], v2\ns_waitcnt lgkmcnt(0)")
        for ep in range(8): a(f"v_mfma_f32_16x16x32_bf16 {vr(32+4*ep)}, v[8:11], {vr(64+4*ep)}, 0")
        skip = self.partial_write_and_reduce(32)
        a(f"v_and_b32 v3, 15, v0\nv_lshlrev_b32 v3, 4, v3\nv_lshrrev_b32 v4, 4, v0\nv_lshl_add_u32 v3, v4, 2, v3\ns_lshl_b32 s64, s3, 8\ns_add_u32 s64, s64, {self.QV}\nv_add_u32 v3, s64, v3")
        a("ds_write_b32 v3, v8\ns_waitcnt lgkmcnt(0)")
        a.label(skip)
        a("s_barrier")
        a(f"v_bfe_u32 v3, v0, 3, 1\nv_lshlrev_b32 v3, 8, v3\nv_lshrrev_b32 v4, 4, v0\nv_lshl_add_u32 v3, v4, 4, v3\nv_add_u32 v3, {self.QV}, v3")
        for ks in range(4): a(f"ds_read_b128 {vr(32+4*ks)}, v3 offset:{ks*64}")
        for ks in range(4):
            a(f"s_waitcnt lgkmcnt({3-ks})")
            for ct in range(2):
                a(f"v_mfma_f32_16x16x32_bf16 {vr(16+4*ct)}, {vr(32+4*ks)}, {vr(96+(ct*4+ks)*4)}, {'0' if ks==0 else vr(16+4*ct)}")
        a(f"v_mov_b32 v28, v16\nv_mov_b32 v12, v20\nv_mov_b32 v29, {TAG}\nv_permlane16_swap_b32 v28, v12")
        a(f"buffer_store_dwordx2 v[28:29], v7, {WS}, s67 offen sc1")
        self.stamp(6)
        self.final_stage(OUTP_B, 1, EPOCH_B)
        self.finish()

    def role_batt(self):
        a = self.a; a.flush(); a.label("L_batt")
        QL = 131072; PL = QL; PSTR = 528; MX = QL + 17408; LS = QL + 20480; OSTR = 1040
        a("s_sub_u32 s61, s2, 64")
        a("v_and_b32 v2, 15, v0\nv_lshrrev_b32 v3, 4, v0\nv_lshlrev_b32 v1, 10, v2\nv_lshl_add_u32 v1, v3, 4, v1")
        a("s_lshl_b32 s60, s61, 18\ns_lshl_b32 s64, s3, 14\ns_add_u32 s60, s60, s64")
        a("s_waitcnt lgkmcnt(0)")
        self.epoch(EPOCH_B)
        self.srd(R1, P_C, 16 << 20); self.srd(WS, P_WS, WS_BYTES)
        for j in range(16): a(f"buffer_load_dwordx4 {vr(64+4*j)}, v1, {R1}, s60 offen offset:{j*64} nt")
        a("v_and_b32 v4, 3, v2\nv_lshlrev_b32 v4, 2, v4\nv_lshrrev_b32 v5, 2, v2\nv_or_b32 v4, v4, v5\nv_xor_b32 v4, v4, v3\nv_lshlrev_b32 v4, 4, v4\nv_lshl_add_u32 v4, v2, 10, v4")
        a("s_and_b32 s64, s3, 7\ns_lshl_b32 s64, s64, 14\nv_add_u32 v4, s64, v4\nv_xor_b32 v5, 64, v4\nv_xor_b32 v6, 0x80, v4\nv_xor_b32 v7, 0xc0, v4")
        a(f"v_lshlrev_b32 v1, 4, v0\ns_lshr_b32 s64, s61, 5\ns_lshl_b32 s64, s64, 16\ns_lshl_b32 s65, s3, 12\ns_add_u32 s64, s64, s65\ns_add_u32 s64, s64, {QABS}")
        a(f"s_lshl_b32 s65, s3, 11\ns_add_u32 s65, s65, {QL}\nv_lshlrev_b32 v16, 3, v0\nv_add_u32 v16, s65, v16\nv_add_u32 v17, 1024, v16")
        self.tag_ready()
        def ctile_write():
            for j in range(16): a(f"ds_write_b128 v{4+(j&3)}, {vr(64+4*j)} offset:{(j>>2)*256}")
        loads = [f"buffer_load_dwordx4 {vr(32+4*q)}, v1, {WS}, s64 offen offset:{q*1024} sc1" for q in range(4)]
        skip = a.newlabel("L_skipc")
        a(f"s_waitcnt vmcnt(0)")
        self.stamp(1)
        a(f"s_cmp_ge_u32 s3, 8\ns_cbranch_scc1 {skip}")
        ctile_write()
        a.label(skip)
        self.poll(loads, [32 + 4 * q + k for q in range(4) for k in (1, 3)])
        for q in range(4): a(f"ds_write2_b32 v{16+(q>>1)}, v{32+4*q}, v{34+4*q} offset0:{(q&1)*128} offset1:{(q&1)*128+1}")
        a(f"v_add_u32 v1, {QL}, v1\ns_waitcnt lgkmcnt(0)\ns_barrier")
        self.stamp(2)
        seq = [(j, hh) for j in range(16) for hh in range(2)]
        for n in range(8):
            j, hh = seq[n]; a(f"ds_read_b128 {vr(32+4*n)}, v1 offset:{(hh*16+j)*1024}")
        for n, (j, hh) in enumerate(seq):
            left = min(7, 31 - n)
            a(f"s_waitcnt lgkmcnt({left})")
            a(f"v_mfma_f32_16x16x32_bf16 {vr(8+4*hh)}, {vr(64+4*j)}, {vr(32+4*(n%8))}, {'0' if j==0 else vr(8+4*hh)}")
            if n + 8 < 32:
                j2, h2 = seq[n + 8]; a(f"ds_read_b128 {vr(32+4*(n%8))}, v1 offset:{(h2*16+j2)*1024}")
        a("s_barrier")
        for hh in range(2):
            a(f"v_max3_f32 v{16+hh}, v{8+4*hh}, v{9+4*hh}, v{10+4*hh}\nv_max_f32 v{16+hh}, v{16+hh}, v{11+4*hh}")
        a("v_permlane32_swap_b32 v16, v17\nv_max_f32 v16, v16, v17")
        self.xreduce("v_max_f32", 16, 17, steps=(16,))
        a(f"v_lshrrev_b32 v18, 5, v0\nv_lshl_add_u32 v18, v18, 4, v2\nv_lshlrev_b32 v18, 6, v18\ns_lshl_b32 s64, s3, 2\nv_add_u32 v18, s64, v18\nv_add_u32 v18, {QL}, v18")
        a(f"ds_write_b32 v18, v16 offset:{MX-QL}")
        a(f"v_lshlrev_b32 v19, 6, v2\nv_lshl_add_u32 v19, v3, 4, v19\nv_add_u32 v19, {QL}, v19")
        a("s_waitcnt lgkmcnt(0)\ns_barrier")
        a(f"ds_read_b128 v[32:35], v19 offset:{MX-QL}\nds_read_b128 v[36:39], v19 offset:{MX-QL+1024}")
        a(f"v_mul_u32_u24 v20, {PSTR}, v2\nv_lshl_add_u32 v20, v3, 3, v20\ns_lshl_b32 s64, s3, 5\ns_add_u32 s64, s64, {PL}\nv_add_u32 v20, s64, v20")
        a("s_waitcnt lgkmcnt(0)")
        for hh in range(2):
            a(f"v_max3_f32 v{16+hh}, v{32+4*hh}, v{33+4*hh}, v{34+4*hh}\nv_max_f32 v{16+hh}, v{16+hh}, v{35+4*hh}")
            self.xreduce("v_max_f32", 16 + hh, 21)
            a(f"v_mul_f32 v{16+hh}, {SC}, v{16+hh}")
        for hh in range(2):
            for r in range(4): a(f"v_fma_f32 v{8+4*hh+r}, v{8+4*hh+r}, {SC}, -v{16+hh}")
            for r in range(4): a(f"v_exp_f32 v{8+4*hh+r}, v{8+4*hh+r}")
        for hh in range(2):
            a(f"v_cvt_pk_bf16_f32 v{32+2*hh}, v{8+4*hh}, v{9+4*hh}\nv_cvt_pk_bf16_f32 v{33+2*hh}, v{10+4*hh}, v{11+4*hh}")
            a(f"ds_write_b64 v20, {vr(32+2*hh,2)} offset:{hh*16*PSTR}")
            a(f"v_add_f32 v{8+4*hh}, v{8+4*hh}, v{9+4*hh}\nv_add_f32 v{10+4*hh}, v{10+4*hh}, v{11+4*hh}\nv_add_f32 v{8+4*hh}, v{8+4*hh}, v{10+4*hh}")
        a("v_permlane32_swap_b32 v8, v12\nv_add_f32 v8, v8, v12")
        self.xreduce("v_add_f32", 8, 9, steps=(16,))
        a(f"ds_write_b32 v18, v8 offset:{LS-QL}")
        a("v_and_b32 v9, 1, v3\nv_cmp_eq_u32 vcc, 1, v9\nv_cndmask_b32 v15, v16, v17, vcc")
        a("v_bfe_u32 v21, v0, 2, 2\nv_lshrrev_b32 v22, 5, v0")
        a("v_lshl_add_u32 v23, v22, 3, v21\nv_lshlrev_b32 v23, 10, v23")
        a("v_lshlrev_b32 v24, 2, v21\nv_lshl_or_b32 v24, v22, 1, v24")
        a("v_bfe_u32 v25, v0, 4, 1\nv_bfe_u32 v26, v0, 1, 1\nv_lshl_or_b32 v25, v25, 1, v26\ns_lshl_b32 s64, s3, 2\nv_or_b32 v25, s64, v25")
        a("v_xor_b32 v25, v25, v24\nv_lshl_add_u32 v8, v25, 4, v23\nv_and_b32 v26, 1, v0\nv_lshl_add_u32 v8, v26, 3, v8")
        a("v_xor_b32 v9, 16, v8\nv_add_u32 v9, 4096, v9\nv_add_u32 v10, 0x10000, v8\nv_add_u32 v11, 0x10000, v9")
        a(f"v_and_b32 v12, 31, v0\nv_mul_u32_u24 v12, {PSTR}, v12\nv_lshl_add_u32 v12, v22, 4, v12\nv_add_u32 v12, {PL}, v12")
        a("s_waitcnt lgkmcnt(0)\ns_barrier")
        self.stamp(3)
        def pv(half):
            def rd(T):
                b = 32 + 8 * (T % 4)
                a(f"ds_read_b64_tr_b16 {vr(b,2)}, v{8+2*(T>>2)} offset:{(T&3)*16384}")
                a(f"ds_read_b64_tr_b16 {vr(b+2,2)}, v{9+2*(T>>2)} offset:{(T&3)*16384}")
                a(f"ds_read_b128 {vr(b+4)}, v12 offset:{(half*8+T)*32}")
            for T in range(4): rd(T)
            for T in range(8):
                b = 32 + 8 * (T % 4)
                a(f"s_waitcnt lgkmcnt({3*min(3,7-T)})")
                a(f"v_mfma_f32_32x32x16_bf16 v[16:31], {vr(b)}, {vr(b+4)}, {'0' if (half==0 and T==0) else 'v[16:31]'}")
                if T + 4 < 8: rd(T + 4)
        pv(0)
        a("s_barrier")
        skip = a.newlabel("L_skipc")
        a(f"s_cmp_lt_u32 s3, 8\ns_cbranch_scc1 {skip}")
        ctile_write()
        a("s_waitcnt lgkmcnt(0)")
        a.label(skip)
        a("s_barrier")
        pv(1)
        a("s_barrier")
        self.stamp(4)
        a(f"v_and_b32 v4, 31, v0\nv_mul_u32_u24 v4, {OSTR}, v4\nv_lshrrev_b32 v5, 5, v0\nv_lshl_add_u32 v4, v5, 3, v4\ns_lshl_b32 s64, s3, 6\nv_add_u32 v4, s64, v4")
        for q in range(4):
            a(f"v_cvt_pk_bf16_f32 v{32+2*q}, v{16+4*q}, v{17+4*q}\nv_cvt_pk_bf16_f32 v{33+2*q}, v{18+4*q}, v{19+4*q}")
            a(f"ds_write_b64 v4, {vr(32+2*q,2)} offset:{q*16}")
        a(f"v_lshlrev_b32 v1, 4, v0\ns_mul_i32 s64, s3, {2*OSTR}\nv_add_u32 v5, s64, v1")
        a(f"s_and_b32 s64, s61, 32\ns_lshl_b32 s65, s3, 1\ns_add_u32 s64, s64, s65\ns_lshl_b32 s64, s64, 5\ns_and_b32 s65, s61, 31\ns_add_u32 s64, s64, s65\ns_lshl_b32 s64, s64, 10\ns_add_u32 s64, s64, {LAT}\ns_add_u32 s65, s64, 32768")
        a("s_waitcnt lgkmcnt(0)\ns_barrier")
        a(f"ds_read_b128 v[32:35], v5\nds_read_b128 v[36:39], v5 offset:{OSTR}")
        a(f"v_and_b32 v6, 31, v0\nv_lshlrev_b32 v7, 6, v6\nv_add_u32 v7, {LS}, v7")
        for q in range(4): a(f"ds_read_b128 {vr(40+4*q)}, v7 offset:{q*16}")
        a(f"s_waitcnt lgkmcnt(5)\nbuffer_store_dwordx4 v[32:35], v1, {WS}, s64 offen sc1\ns_waitcnt lgkmcnt(4)\nbuffer_store_dwordx4 v[36:39], v1, {WS}, s65 offen sc1")
        a("s_waitcnt lgkmcnt(0)")
        for st in (8, 4, 2):
            for i in range(0, st, 2): a(f"v_pk_add_f32 {vr(40+i,2)}, {vr(40+i,2)}, {vr(40+i+st,2)}")
        a(f"v_add_f32 v46, v40, v41\nv_mov_b32 v44, v15\nv_mov_b32 v45, {TAG}\nv_mov_b32 v47, {TAG}")
        a(f"v_lshlrev_b32 v6, 10, v6\ns_lshl_b32 s64, s61, 4\ns_add_u32 s64, s64, {MLB}")
        a("s_waitcnt vmcnt(0)\ns_barrier")
        end = a.newlabel("L_bend")
        a(f"s_cmp_lg_u32 s3, 0\ns_cbranch_scc1 {end}")
        a(f"s_mov_b32 exec_hi, 0\nbuffer_store_dwordx4 v[44:47], v6, {WS}, s64 offen sc1\ns_mov_b64 exec, -1")
        a.label(end)
        self.stamp(5)
        self.finish()

    def role_aatt(self):
        a = self.a; a.flush(); a.label("L_aatt")
        MX, LS, RED = 0, 256, 1024
        a("s_sub_u32 s61, s2, 128")
        a("v_bfe_u32 v3, v0, 2, 2\nv_lshlrev_b32 v1, 8, v3\nv_lshrrev_b32 v4, 4, v0\nv_lshl_add_u32 v1, v4, 6, v1\nv_and_b32 v5, 3, v0\nv_lshl_add_u32 v1, v5, 4, v1\nv_lshlrev_b32 v2, 4, v0")
        a("s_lshl_b32 s60, s61, 18\ns_lshl_b32 s64, s3, 14\ns_add_u32 s60, s60, s64\ns_add_u32 s65, s60, 4096\ns_add_u32 s66, s60, 8192\ns_add_u32 s67, s60, 12288")
        so = ["s60", "s65", "s66", "s67"]
        a("s_waitcnt lgkmcnt(0)")
        self.epoch(EPOCH_A)
        self.srd(R1, P_K, 32 << 20); self.srd(R2, P_V, 32 << 20); self.srd(WS, P_WS, WS_BYTES)
        d = self.kdepth
        for i in range(16):
            a(f"buffer_load_dwordx4 {vr(64+4*i)}, v1, {R1}, {so[i>>2]} offen offset:{(i&3)*1024} nt")
            if d and i + 1 >= d: a(f"s_waitcnt vmcnt({d-1})")
        a(f"v_lshlrev_b32 v6, 1, v1\ns_lshr_b32 s64, s61, 3\ns_lshl_b32 s64, s64, 11\ns_add_u32 s64, s64, {QA}")
        loads = [f"buffer_load_dwordx4 {vr(12+4*q)}, v6, {WS}, s64 offen offset:{q*16} sc1" for q in range(2)]
        for l in loads: a(l)
        for e in range(8): a(f"buffer_load_dwordx4 {vr(32+4*e)}, v2, {R2}, {so[e>>2]} offen offset:{(e&3)*1024} nt")
        self.tag_ready()
        for v in range(4):
            a(f"s_mov_b32 s{36+8+2*v}, {hex(0x11111111<<v)}\ns_mov_b32 s{36+9+2*v}, {hex(0x11111111<<v)}")
        self.poll(loads, [13, 15, 17, 19], first_wait=8, issued=True)
        self.stamp(1)
        a("v_mov_b32 v8, v12\nv_mov_b32 v9, v14\nv_mov_b32 v10, v16\nv_mov_b32 v11, v18")
        for i in range(16): a(f"v_mfma_f32_16x16x32_bf16 {vr(64+4*i)}, {vr(64+4*i)}, v[8:11], 0")
        for g in range(4):
            self.diag_sum([(64 + 4 * i, 16 + i) for i in range(4*g, 4*g+4)])
            for i in range(4*g, 4*g+4):
                if i < 8: a(f"buffer_load_dwordx4 {vr(64+4*i)}, v2, {R2}, {so[2+(i>>2)]} offen offset:{(i&3)*1024} nt")
        a("v_max3_f32 v8, v16, v17, v18")
        for i in range(19, 31, 2): a(f"v_max3_f32 v8, v8, v{i}, v{i+1}")
        a("v_max_f32 v8, v8, v31")
        self.xreduce("v_max_f32", 8, 9)
        a(f"v_lshlrev_b32 v6, 6, v3\ns_lshl_b32 s64, s3, 2\nv_add_u32 v7, s64, v6\nds_write_b32 v7, v8 offset:{MX}\ns_waitcnt lgkmcnt(0)\ns_barrier")
        for q in range(4): a(f"ds_read_b128 {vr(96+4*q)}, v6 offset:{MX+16*q}")
        a("s_waitcnt lgkmcnt(0)\nv_max3_f32 v8, v96, v97, v98")
        for i in range(99, 111, 2): a(f"v_max3_f32 v8, v8, v{i}, v{i+1}")
        a(f"v_max_f32 v8, v8, v111\nv_mul_f32 v4, {SC}, v8")
        for i in range(16): a(f"v_fma_f32 v{16+i}, v{16+i}, {SC}, -v4")
        for i in range(16): a(f"v_exp_f32 v{16+i}, v{16+i}")
        for i in range(8): a(f"v_cvt_pk_bf16_f32 v{8+i}, v{16+2*i}, v{17+2*i}")
        for st in (8, 4, 2):
            for i in range(0, st, 2): a(f"v_pk_add_f32 {vr(16+i,2)}, {vr(16+i,2)}, {vr(16+i+st,2)}")
        a("v_add_f32 v16, v16, v17")
        self.xreduce("v_add_f32", 16, 17)
        a(f"ds_write_b32 v7, v16 offset:{LS}")
        for blk in range(2):
            for v in range(4):
                for t in range(4): a(f"v_cndmask_b32 v{96+16*blk+4*v+t}, 0, v{8+4*blk+t}, s[{44+2*v}:{45+2*v}]")
        a("s_waitcnt lgkmcnt(0)\ns_barrier")
        self.stamp(2)
        skip = a.newlabel("L_skipml")
        a(f"s_cmp_lg_u32 s3, 0\ns_cbranch_scc1 {skip}")
        for q in range(4): a(f"ds_read_b128 {vr(16+4*q)}, v6 offset:{LS+16*q}")
        a(f"s_bfe_u32 s64, s61, 0x30003\ns_lshl_b32 s64, s64, 10\ns_lshr_b32 s68, s61, 6\ns_lshl_b32 s68, s68, 3\ns_and_b32 s69, s61, 7\ns_add_u32 s68, s68, s69\ns_lshl_b32 s68, s68, 4\ns_add_u32 s64, s64, s68\ns_add_u32 s64, s64, {MLA}")
        a("v_lshlrev_b32 v5, 8, v3\ns_waitcnt lgkmcnt(0)")
        for st in (8, 4, 2):
            for i in range(0, st, 2): a(f"v_pk_add_f32 {vr(16+i,2)}, {vr(16+i,2)}, {vr(16+i+st,2)}")
        a(f"v_add_f32 v22, v16, v17\nv_mov_b32 v20, v4\nv_mov_b32 v21, {TAG}\nv_mov_b32 v23, {TAG}")
        a(f"s_mov_b64 exec, 0x1111\nbuffer_store_dwordx4 v[20:23], v5, {WS}, s64 offen sc1\ns_mov_b64 exec, -1\ns_nop 1")
        a.label(skip)
        a(f"v_lshlrev_b32 v5, 5, v0\ns_lshl_b32 s64, s3, 11\ns_add_u32 s64, s64, {RED}\nv_add_u32 v5, s64, v5")
        a(f"v_lshlrev_b32 v6, 3, v0\ns_lshl_b32 s64, s3, 9\ns_add_u32 s64, s64, {RED}\nv_add_u32 v7, s64, v6")
        a(f"s_bfe_u32 s64, s61, 0x30003\ns_lshl_b32 s64, s64, 2\ns_add_u32 s64, s64, s3\ns_lshl_b32 s64, s64, 13\ns_lshr_b32 s68, s61, 6\ns_lshl_b32 s68, s68, 3\ns_and_b32 s69, s61, 7\ns_add_u32 s68, s68, s69\ns_lshl_b32 s68, s68, 9\ns_add_u32 s64, s64, s68\ns_add_u32 s64, s64, {OPART}")
        for blk in range(2):
            a(f"s_waitcnt vmcnt({8 if blk==0 else 0})")
            W = 32 + 32 * blk
            for ep in range(8):
                t = 16 + 4 * (ep % 4)
                self.perm_frag(W, ep, t)
                D = 8 + 4 * (ep >> 2)
                first = (blk == 0 and (ep & 3) == 0)
                a(f"v_mfma_f32_16x16x32_bf16 {vr(D)}, {vr(96+16*blk+4*(ep&3))}, {vr(t)}, {'0' if first else vr(D)}")
        self.stamp(3)
        a("ds_write_b128 v5, v[8:11]\nds_write_b128 v5, v[12:15] offset:16\ns_waitcnt lgkmcnt(0)\ns_barrier")
        end = a.newlabel("L_aend")
        a(f"s_cmp_ge_u32 s3, 4\ns_cbranch_scc1 {end}")
        for w in range(16): a(f"ds_read_b64 {vr(32+2*w,2)}, v7 offset:{w*2048}")
        a(f"v_mov_b32 v9, {TAG}\ns_waitcnt lgkmcnt(0)")
        for st in (16, 8, 4, 2):
            for i in range(0, st, 2): a(f"v_pk_add_f32 {vr(32+i,2)}, {vr(32+i,2)}, {vr(32+i+st,2)}")
        a(f"v_cvt_pk_bf16_f32 v8, v32, v33\nbuffer_store_dwordx2 v[8:9], v6, {WS}, s64 offen sc1")
        a.label(end)
        self.stamp(4)
        self.finish()

    def build(self):
        a = self.a
        hdr = open("cdna_kernels/" + NAME + ".s.ref").read().split("; @launch")[0]
        a.raw(hdr.rstrip("\n"))
        a.raw("; @launch grid=(256,1,1) block=(1024,1,1) lds=163840")
        a.raw('.amdgcn_target "amdgcn-amd-amdhsa--gfx950"\n.text\n.globl %s_kernel\n.p2align 8\n.type %s_kernel,@function\n%s_kernel:' % (NAME, NAME, NAME))
        if self.stamps: a("s_memrealtime s[72:73]")
        a("s_cmp_ge_u32 s2, 256\ns_cbranch_scc1 L_exit")
        a("s_load_dwordx16 s[4:19], s[0:1], 0\ns_load_dwordx8 s[20:27], s[0:1], 64\ns_load_dwordx4 s[28:31], s[0:1], 96")
        a("v_lshrrev_b32 v1, 6, v0\nv_and_b32 v0, 63, v0\nv_readfirstlane_b32 s3, v1")
        a(f"s_mov_b32 {SELLO}, 0x05040100\ns_mov_b32 {SELHI}, 0x07060302\ns_mov_b32 {SC}, {hex(SCALE_BITS)}")
        self.stamp_init()
        a("s_cmp_ge_u32 s2, 128\ns_cbranch_scc1 L_aatt\ns_cmp_ge_u32 s2, 64\ns_cbranch_scc1 L_batt\ns_cmp_ge_u32 s2, 32\ns_cbranch_scc1 L_ahead\ns_branch L_bhead")
        a.label("L_exit"); a("s_endpgm")
        self.role_aatt(); self.role_batt(); self.role_ahead(); self.role_bhead()
        a.raw('.section .rodata,"a"\n.p2align 6\n.amdhsa_kernel %s_kernel' % NAME)
        a.raw("  .amdhsa_next_free_vgpr 128\n  .amdhsa_next_free_sgpr 96\n  .amdhsa_accum_offset 128\n  .amdhsa_group_segment_fixed_size 0\n  .amdhsa_kernarg_size 112\n  .amdhsa_user_sgpr_count 2\n  .amdhsa_user_sgpr_kernarg_segment_ptr 1\n  .amdhsa_system_sgpr_workgroup_id_x 1\n.end_amdhsa_kernel")
        return a.text()

if __name__ == "__main__":
    import argparse
    p = argparse.ArgumentParser(); p.add_argument("out"); p.add_argument("--stamps", action="store_true"); p.add_argument("--kdepth", type=int, default=0)
    x = p.parse_args()
    open(x.out, "w").write(Gen(stamps=x.stamps, kdepth=x.kdepth).build())
```

```python
import sys, math, struct
sys.path.insert(0, "gen")
from asmlib import Asm

NAME = "concat_heads__gqa_block_cached__compressed_kv_cla__decode"
EPOCH = 0x0
QABS, MLA, MLB = 0x20000, 0x40000, 0x50000
QAP, QBP, CTXP, OPART, OUTP_A, OUTP_B, LAT = 0x80000, 0xC0000, 0x100000, 0x140000, 0x180000, 0x1C0000, 0x400000
STAMP = 0x1000000
WS_BYTES = 0x10000000
SPIN = 20000
DPP = "row_mask:0xf bank_mask:0xf"
SCALE = math.log2(math.e) / math.sqrt(128.0)
SCALE_BITS = struct.unpack("<I", struct.pack("<f", SCALE))[0]

P_AX, P_K, P_V, P_WQ, P_WO, P_BX, P_C, P_BWQ, P_UK, P_UV, P_BWO, P_OUT, P_DBG, P_WS = 4, 6, 8, 10, 12, 14, 16, 18, 20, 22, 24, 26, 28, 30
WS, R1, R2, R3, R4, R5 = "s[32:35]", "s[36:39]", "s[40:43]", "s[44:47]", "s[48:51]", "s[52:55]"
TAG, CNT, SELLO, SELHI, SC = "s56", "s57", "s58", "s59", "s71"
H, Q, U = "s61", "s68", "s69"

def vr(a, n=4): return f"v[{a}:{a+n-1}]"
def fsw(i): return ((i & 3) << 2) | ((i >> 2) & 3)

class Gen:
    def __init__(self, stamps=False, **o):
        self.a = Asm(); self.stamps = stamps; self.o = o
    def srd(self, name, ptr, nbytes):
        b = int(name[2:].split(":")[0])
        self.a(f"s_mov_b32 s{b}, s{ptr}\ns_mov_b32 s{b+1}, s{ptr+1}\ns_mov_b32 s{b+2}, {hex(nbytes)}\ns_mov_b32 s{b+3}, 0x20000")
    def stamp(self, i):
        if self.stamps:
            self.a(f"s_memrealtime s[{72+2*i}:{73+2*i}]\ns_waitcnt lgkmcnt(0)")
    def stamp_init(self):
        if self.stamps:
            for i in range(2, 28): self.a(f"s_mov_b32 s{72+i}, 0")
    def finish(self):
        a = self.a
        if self.stamps:
            self.stamp(13)
            a("s_mov_b64 exec, 1")
            a(f"s_lshl_b32 s60, s2, 4\ns_add_u32 s60, s60, s3\ns_lshl_b32 s60, s60, 7\ns_add_u32 s60, s60, {STAMP}")
            a("v_mov_b32 v1, 0")
            for q in range(7):
                for i in range(4): a(f"v_mov_b32 v{4+i}, s{72+4*q+i}")
                a(f"buffer_store_dwordx4 v[4:7], v1, {WS}, s60 offen offset:{16*q}")
                a("s_nop 1")
            a("s_waitcnt vmcnt(0)")
        a("s_endpgm")
    def epoch(self):
        self.a(f"s_load_dword {TAG}, s[{P_WS}:{P_WS+1}], {EPOCH}")
    def tag_ready(self):
        self.a(f"s_waitcnt lgkmcnt(0)\ns_mul_i32 {TAG}, {TAG}, 1664525\ns_add_u32 {TAG}, {TAG}, 1013904223")
    def poll(self, loads, tagregs, first_wait=None, issued=False, sleep=2):
        a = self.a
        L, OK, CHK = a.newlabel("L_poll"), a.newlabel("L_ok"), a.newlabel("L_chk")
        a(f"s_mov_b32 {CNT}, {SPIN}")
        if issued:
            a(f"s_waitcnt vmcnt({first_wait})\ns_branch {CHK}")
        a.label(L)
        for l in loads: a(l)
        a("s_waitcnt vmcnt(0)")
        a.label(CHK)
        for i, t in enumerate(tagregs):
            if i == 0: a(f"v_cmp_ne_u32 vcc, {TAG}, v{t}")
            else: a(f"v_cmp_ne_u32 s[62:63], {TAG}, v{t}\ns_or_b64 vcc, vcc, s[62:63]")
        a(f"s_cmp_eq_u64 vcc, 0\ns_cbranch_scc1 {OK}")
        if sleep: a(f"s_sleep {sleep}")
        a(f"s_sub_u32 {CNT}, {CNT}, 1\ns_cmp_lg_u32 {CNT}, 0\ns_cbranch_scc1 {L}")
        a.label(OK)
    def lds_signal(self, addr):
        self.a(f"s_waitcnt lgkmcnt(0)\ns_mov_b64 exec, 1\nv_mov_b32 v6, {addr}\nv_mov_b32 v7, 1\nds_add_u32 v6, v7\ns_mov_b64 exec, -1")
    def lds_wait(self, addr, n):
        a = self.a
        L, OK = a.newlabel("L_lw"), a.newlabel("L_lok")
        a(f"s_mov_b32 {CNT}, {SPIN*50}\nv_mov_b32 v6, {addr}")
        a.label(L)
        a(f"ds_read_b32 v7, v6\ns_waitcnt lgkmcnt(0)\nv_readfirstlane_b32 s62, v7\ns_cmp_ge_u32 s62, {n}\ns_cbranch_scc1 {OK}")
        a(f"s_sleep 1\ns_sub_u32 {CNT}, {CNT}, 1\ns_cmp_lg_u32 {CNT}, 0\ns_cbranch_scc1 {L}")
        a.label(OK)
    def perm_frag(self, W, ep, dst):
        for t in range(4):
            self.a(f"v_perm_b32 v{dst+t}, v{W+4*(2*t+1)+(ep>>1)}, v{W+4*(2*t)+(ep>>1)}, {SELHI if ep&1 else SELLO}")
    def diag_sum(self, lst):
        a = self.a
        for D, dst in lst: a(f"v_mov_b32_dpp v{dst}, v{D} quad_perm:[0,0,0,0] {DPP}")
        for i in (1, 2, 3):
            for D, dst in lst: a(f"v_add_f32_dpp v{dst}, v{D+i}, v{dst} quad_perm:[{i},{i},{i},{i}] {DPP}")
    def xreduce(self, op, x, t, steps=(32, 16)):
        for s in steps:
            self.a(f"v_mov_b32 v{t}, v{x}\nv_permlane{s}_swap_b32 v{x}, v{t}\n{op} v{x}, v{x}, v{t}")
    def dpp_reduce(self, op, x, src, n):
        pats = ["quad_perm:[1,0,3,2]", "quad_perm:[2,3,0,1]", "row_half_mirror", "row_mirror"][:n]
        for i, p in enumerate(pats):
            s = src if i == 0 else x
            self.a(f"{op}_dpp v{x}, v{s}, v{s} {p} {DPP}")

    QL = 131072
    def proj(self, vec, weights, add):
        a = self.a
        for ks in range(4): a(f"ds_read_b128 {vr(32+4*ks)}, v3 offset:{vec+ks*64}")
        for ks in range(4):
            a(f"s_waitcnt lgkmcnt({3-ks})")
            for ct in range(2):
                a(f"v_mfma_f32_16x16x32_bf16 {vr(16+4*ct)}, {vr(32+4*ks)}, {vr(96+(ct*4+ks)*4)}, {'0' if ks==0 else vr(16+4*ct)}")
        if weights:
            for ct in range(2): a(f"v_mul_f32 v{12+ct}, v24, v{16+4*ct}")
            for r in range(1, 4):
                for ct in range(2): a(f"v_fmac_f32 v{12+ct}, v{24+r}, v{16+4*ct+r}")
        else:
            for ct in range(2): a(f"v_pk_add_f32 {vr(16+4*ct,2)}, {vr(16+4*ct,2)}, {vr(18+4*ct,2)}")
            for ct in range(2): a(f"v_add_f32 v{12+ct}, v{16+4*ct}, v{17+4*ct}")
        a("v_permlane16_swap_b32 v12, v13")
        a("v_add_f32 v28, v12, v13" if add else "v_mov_b32 v28, v12")
    def front_q(self, xptr, wptr, red, flag, dst):
        a = self.a
        a("v_lshrrev_b32 v3, 4, v0\nv_lshlrev_b32 v4, 16, v3\nv_and_b32 v2, 15, v0\nv_lshl_add_u32 v4, v2, 4, v4")
        a("v_and_b32 v5, 1, v0\nv_lshlrev_b32 v5, 10, v5\nv_lshl_add_u32 v5, v3, 4, v5")
        a(f"s_lshl_b32 s60, {Q}, 2\ns_add_u32 s60, s60, {U}\ns_lshl_b32 s65, s60, 6\ns_lshl_b32 s60, s60, 18\ns_lshl_b32 s64, {H}, 8\ns_add_u32 s60, s60, s64")
        a("s_waitcnt lgkmcnt(0)")
        self.epoch()
        self.srd(R1, wptr, 4 << 20); self.srd(R2, xptr, 2048); self.srd(WS, P_WS, WS_BYTES)
        a(f"buffer_load_dwordx4 v[8:11], v5, {R2}, s65 offen")
        for e in range(8): a(f"s_add_u32 s64, s60, {e*8192}\nbuffer_load_dwordx4 {vr(32+4*e)}, v4, {R1}, s64 offen nt")
        self.tag_ready()
        a("s_barrier")
        a(f"v_lshlrev_b32 v5, 3, v2\ns_lshl_b32 s64, {U}, 10\ns_add_u32 s64, s64, {red}\nv_add_u32 v5, s64, v5")
        a("s_waitcnt vmcnt(0)")
        self.stamp(1)
        for ep in range(8):
            t = 12 + 4 * (ep % 4)
            self.perm_frag(32, ep, t)
            a(f"v_mfma_f32_16x16x32_bf16 {vr(64+4*ep)}, v[8:11], {vr(t)}, 0")
        a("s_mov_b64 exec, 0xffff")
        for e in range(8): a(f"ds_write_b64 v5, {vr(64+4*e,2)} offset:{e*128}")
        a("s_mov_b64 exec, -1")
        self.lds_signal(flag)
        skip = a.newlabel("L_skipred")
        a(f"s_cmp_ge_u32 {U}, 2\ns_cbranch_scc1 {skip}")
        a(f"v_lshlrev_b32 v4, 8, v3\nv_lshl_add_u32 v4, v2, 3, v4\ns_lshl_b32 s64, {U}, 2\ns_add_u32 s64, s64, {red}\nv_add_u32 v4, s64, v4\nv_add_u32 v5, 128, v4")
        a(f"v_lshlrev_b32 v12, 6, v2\nv_lshl_add_u32 v12, v3, 4, v12\ns_lshl_b32 s64, {H}, 13\ns_lshl_b32 s65, {U}, 10\ns_add_u32 s64, s64, s65\ns_add_u32 s64, s64, {dst}\ns_lshl_b32 s65, {Q}, 11\ns_add_u32 s65, s65, s64")
        a(f"v_mov_b32 v9, {TAG}\nv_mov_b32 v11, {TAG}")
        self.lds_wait(flag, 4)
        a("ds_read2st64_b32 v[16:17], v4 offset0:0 offset1:4\nds_read2st64_b32 v[18:19], v4 offset0:8 offset1:12")
        a("ds_read2st64_b32 v[20:21], v5 offset0:0 offset1:4\nds_read2st64_b32 v[22:23], v5 offset0:8 offset1:12")
        a("s_waitcnt lgkmcnt(0)\nv_pk_add_f32 v[16:17], v[16:17], v[18:19]\nv_pk_add_f32 v[20:21], v[20:21], v[22:23]\nv_add_f32 v8, v16, v17\nv_add_f32 v10, v20, v21")
        a(f"buffer_store_dwordx4 v[8:11], v12, {WS}, s65 offen sc1")
        self.stamp(2)
        return skip
    def gather4(self, base, first_wait=None, issued=False, sleep=2, only_issue=False):
        a = self.a
        loads = [f"buffer_load_dwordx4 {vr(base+4*i)}, v1, {WS}, {'s64' if i<2 else 's66'} offen offset:{(i&1)*2048} sc1" for i in range(4)]
        if only_issue:
            for l in loads: a(l)
            return
        self.poll(loads, [base + 4 * i + k for i in range(4) for k in (1, 3)], first_wait=first_wait, issued=issued, sleep=sleep)
        a(f"v_add_f32 v{base}, v{base}, v{base+4}\nv_add_f32 v{base+2}, v{base+2}, v{base+6}\nv_add_f32 v{base+8}, v{base+8}, v{base+12}\nv_add_f32 v{base+10}, v{base+10}, v{base+14}")
        a(f"v_add_f32 v{base}, v{base}, v{base+8}\nv_add_f32 v{base+2}, v{base+2}, v{base+10}\nv_cvt_pk_bf16_f32 v{base}, v{base}, v{base+2}")
    def final_stage(self, outp, part, sl):
        a = self.a
        self.srd(R1, P_OUT, 4096)
        a(f"s_lshl_b32 s64, {sl}, 12\ns_add_u32 s64, s64, {outp}")
        loads = [f"buffer_load_dwordx4 {vr(32+4*i)}, v1, {WS}, s64 offen offset:{i*1024} sc1" for i in range(4)]
        a(f"s_lshr_b32 s66, {sl}, 5\ns_lshl_b32 s66, s66, 11\ns_and_b32 s65, {sl}, 31\ns_lshl_b32 s65, s65, 5\ns_add_u32 s66, s66, s65\ns_add_u32 s66, s66, {part*1024}")
        a("v_lshlrev_b32 v2, 2, v0")
        self.poll(loads, [32 + 4 * i + k for i in range(4) for k in (1, 3)], sleep=self.o.get("tailsleep", 1))
        for st in (8, 4):
            for i in range(0, st, 2): a(f"v_add_f32 v{32+i}, v{32+i}, v{32+i+st}")
        a(f"v_add_f32_dpp v32, v32, v32 row_ror:8 {DPP}\nv_add_f32_dpp v34, v34, v34 row_ror:8 {DPP}")
        for s in (32, 16):
            a(f"v_mov_b32 v33, v32\nv_mov_b32 v35, v34\nv_permlane{s}_swap_b32 v32, v33\nv_permlane{s}_swap_b32 v34, v35\nv_add_f32 v32, v32, v33\nv_add_f32 v34, v34, v35")
        a("v_cvt_pk_bf16_f32 v32, v32, v34\ns_mov_b64 exec, 0xff")
        a(f"buffer_store_dword v32, v2, {R1}, s66 offen\ns_mov_b64 exec, -1")

    def role_n(self):
        a = self.a; a.flush(); a.label("L_n")
        QL = self.QL
        REDB, REDA, QV, F1, F2, F3 = QL, QL + 4096, QL + 8192, QL + 8704, QL + 8708, QL + 8712
        PL, MX, LS, WSCR = QL, QL + 24576, QL + 25600, QL + 30720
        WB, WSTR, OSTR = 40960, 288, 1040
        VEC1, VEC2, VEC3 = 0, 8192, 16384
        a(f"s_and_b32 {H}, s2, 31\ns_lshr_b32 {Q}, s2, 5\ns_and_b32 {U}, s3, 3\nv_lshlrev_b32 v1, 4, v0")
        a("s_lshr_b32 s64, s3, 2\ns_cmp_eq_u32 s64, 1\ns_cbranch_scc1 L_g1\ns_cmp_eq_u32 s64, 2\ns_cbranch_scc1 L_g2\ns_cmp_eq_u32 s64, 3\ns_cbranch_scc1 L_g3")
        a(f"v_mov_b32 v6, {F1}\nv_mov_b32 v8, 0\nv_mov_b32 v9, 0\nv_mov_b32 v10, 0\nv_mov_b32 v11, 0\nds_write_b128 v6, v[8:11]")
        skip = self.front_q(P_BX, P_BWQ, REDB, F1, QBP)
        a("s_add_u32 s66, s64, 4096")
        a(f"s_lshl_b32 s65, {U}, 8\ns_add_u32 s65, s65, {QV}\nv_lshlrev_b32 v4, 2, v0\nv_add_u32 v4, s65, v4")
        self.gather4(16, sleep=1)
        a("ds_write_b32 v4, v16")
        self.lds_signal(F2)
        self.stamp(3)
        a.label(skip)
        self.srd(R3, P_UV, 4 << 20)
        a(f"s_lshl_b32 s67, {Q}, 2\ns_add_u32 s67, s67, {U}\ns_lshl_b32 s67, s67, 18\ns_lshl_b32 s64, {H}, 8\ns_add_u32 s67, s67, s64\ns_mov_b32 s70, 8192")
        a("s_branch L_qpoll")
        a.flush(); a.label("L_g1")
        a("v_bfe_u32 v4, v0, 2, 2\nv_lshlrev_b32 v4, 16, v4\nv_lshrrev_b32 v3, 4, v0\nv_lshl_add_u32 v4, v3, 6, v4\nv_and_b32 v2, 3, v0\nv_lshl_add_u32 v4, v2, 4, v4")
        a(f"s_lshl_b32 s60, {Q}, 2\ns_add_u32 s60, s60, {U}\ns_lshl_b32 s65, s60, 12\ns_lshl_b32 s60, s60, 18\ns_lshl_b32 s64, {H}, 8\ns_add_u32 s60, s60, s64")
        a("s_waitcnt lgkmcnt(0)")
        self.epoch()
        self.srd(R1, P_UK, 4 << 20); self.srd(WS, P_WS, WS_BYTES)
        for i in range(8): a(f"s_add_u32 s64, s60, {i*8192}\nbuffer_load_dwordx4 {vr(64+4*i)}, v4, {R1}, s64 offen nt")
        self.tag_ready()
        a("s_barrier")
        a(f"v_bfe_u32 v5, v0, 2, 1\nv_lshlrev_b32 v4, 8, v5\nv_lshl_add_u32 v4, v3, 6, v4\nv_lshl_add_u32 v4, v2, 4, v4\nv_add_u32 v4, {QV}, v4")
        a("v_lshlrev_b32 v5, 16, v5\nv_lshl_add_u32 v5, v3, 10, v5\nv_and_b32 v2, 1, v0\nv_lshl_add_u32 v5, v2, 4, v5\nv_cmp_eq_u32 s[66:67], 1, v2")
        a(f"s_lshl_b32 s64, {H}, 5\ns_add_u32 s65, s65, s64\ns_add_u32 s65, s65, {QABS}")
        a(f"v_mov_b32 v25, {TAG}\nv_mov_b32 v27, {TAG}\ns_waitcnt vmcnt(0)")
        self.stamp(1)
        self.lds_wait(F2, 2)
        a("ds_read_b128 v[8:11], v4\ns_waitcnt lgkmcnt(0)")
        for i in range(8): a(f"v_mfma_f32_16x16x32_bf16 {vr(64+4*i)}, {vr(64+4*i)}, v[8:11], 0")
        for g in range(2): self.diag_sum([(64 + 4 * i, 12 + i) for i in range(4*g, 4*g+4)])
        for i in range(4): a(f"v_cvt_pk_bf16_f32 v{20+i}, v{12+2*i}, v{13+2*i}")
        a("v_cndmask_b32 v24, v20, v22, s[66:67]\nv_cndmask_b32 v26, v21, v23, s[66:67]")
        a(f"s_mov_b32 exec_lo, 0x00330033\ns_mov_b32 exec_hi, 0x00330033\nbuffer_store_dwordx4 v[24:27], v5, {WS}, s65 offen sc1\ns_mov_b64 exec, -1")
        self.stamp(3)
        self.srd(R3, P_BWO, 4 << 20)
        a(f"s_lshl_b32 s67, {H}, 17\ns_lshl_b32 s64, {U}, 15\ns_add_u32 s67, s67, s64\ns_lshl_b32 s64, {Q}, 8\ns_add_u32 s67, s67, s64\ns_mov_b32 s70, 1024")
        a.flush(); a.label("L_qpoll")
        a(f"s_lshr_b32 s64, s2, 6\ns_lshl_b32 s64, s64, 16\ns_lshl_b32 s65, s3, 13\ns_add_u32 s64, s64, s65\ns_add_u32 s64, s64, {QABS}\ns_add_u32 s65, s64, 4096")
        loads = [f"buffer_load_dwordx4 {vr(32+4*q)}, v1, {WS}, s{64+(q>>2)} offen offset:{(q&3)*1024} sc1" for q in range(8)]
        self.poll(loads[7:], [61, 63], sleep=4)
        self.poll(loads, [32 + 4 * q + k for q in range(8) for k in (1, 3)], sleep=4)
        a(f"s_lshl_b32 s65, s3, 12\ns_add_u32 s65, s65, {QL}\nv_lshlrev_b32 v8, 3, v0\nv_add_u32 v8, s65, v8\nv_add_u32 v9, 1024, v8\nv_add_u32 v10, 2048, v8\nv_add_u32 v11, 3072, v8")
        self.stamp(4)
        a("s_barrier")
        for q in range(8): a(f"ds_write2_b32 v{8+(q>>1)}, v{32+4*q}, v{34+4*q} offset0:{(q&1)*128} offset1:{(q&1)*128+1}")
        a("s_waitcnt lgkmcnt(0)\ns_branch L_b1")
        a.flush(); a.label("L_g2")
        skip = self.front_q(P_AX, P_WQ, REDA, F3, QAP)
        a.label(skip)
        self.srd(R3, P_WO, 4 << 20)
        a(f"s_lshl_b32 s67, {H}, 17\ns_lshl_b32 s64, {U}, 15\ns_add_u32 s67, s67, s64\ns_lshl_b32 s64, {Q}, 8\ns_add_u32 s67, s67, s64\ns_mov_b32 s70, 1024")
        a("s_waitcnt lgkmcnt(0)\ns_barrier")
        a.flush(); a.label("L_b1")
        a("s_barrier")
        a("v_lshrrev_b32 v3, 4, v0\nv_and_b32 v2, 15, v0\ns_lshl_b32 s64, s70, 3\nv_mul_lo_u32 v5, v3, s64\nv_lshl_add_u32 v5, v2, 4, v5")
        def wload(e0, e1):
            for e in range(e0, e1):
                a(f"s_mul_i32 s64, s70, {e}\ns_add_u32 s64, s64, s67\nbuffer_load_dwordx4 {vr(96+4*e)}, v5, {R3}, s64 offen nt")
        wload(0, 4)
        a("s_barrier\ns_barrier")
        a("s_branch L_pv")
        a.flush(); a.label("L_g3")
        a(f"s_lshl_b32 s60, s2, 17\ns_lshl_b32 s66, {U}, 15\ns_add_u32 s60, s60, s66")
        a("s_waitcnt lgkmcnt(0)")
        self.epoch()
        self.srd(R1, P_C, 16 << 20); self.srd(WS, P_WS, WS_BYTES); self.srd(R3, P_WO, 4 << 20)
        a("s_barrier")
        cd = self.o.get("cdepth", 0)
        for i in range(32):
            a(f"v_xor_b32 v{4+(i&1)}, {fsw(i&15)*16}, v1\ns_add_u32 m0, s66, {i*1024}\ns_add_u32 s64, s60, {i*1024}\nbuffer_load_dwordx4 v{4+(i&1)}, {R1}, s64 offen nt lds")
            if cd and i + 1 >= cd: a(f"s_waitcnt vmcnt({cd-1})")
        self.tag_ready()
        a("v_and_b32 v2, 31, v0\nv_lshrrev_b32 v3, 5, v0\nv_and_b32 v4, 3, v0\nv_lshlrev_b32 v4, 2, v4\nv_bfe_u32 v5, v0, 2, 2\nv_or_b32 v4, v4, v5\nv_xor_b32 v4, v4, v3")
        a("v_lshlrev_b32 v4, 4, v4\nv_lshl_add_u32 v4, v2, 10, v4\nv_add_u32 v96, s66, v4")
        for jj in range(1, 8): a(f"v_xor_b32 v{96+jj}, {jj*32}, v96")
        a(f"v_add_u32 v104, {QL}, v1")
        a("s_waitcnt vmcnt(0)")
        self.stamp(1)
        a("s_barrier\ns_barrier")
        self.stamp(5)
        NF = 7
        def rd(j):
            b = 32 + 8 * (j % 8)
            a(f"ds_read_b128 {vr(b)}, v{96+(j&7)} offset:{(j>>3)*256}\nds_read_b128 {vr(b+4)}, v104 offset:{j*1024}")
        for j in range(NF): rd(j)
        for j in range(32):
            b = 32 + 8 * (j % 8)
            a(f"s_waitcnt lgkmcnt({2*min(NF-1, 31-j)})")
            a(f"v_mfma_f32_32x32x16_bf16 v[16:31], {vr(b)}, {vr(b+4)}, {'0' if j==0 else 'v[16:31]'}")
            if j + NF < 32: rd(j + NF)
        a("s_barrier")
        a(f"v_lshlrev_b32 v6, 4, v2\nv_add_u32 v6, {QL}, v6\ns_lshl_b32 s64, {U}, 2\nv_add_u32 v7, s64, v6")
        a("v_max3_f32 v8, v16, v17, v18")
        for i in range(19, 31, 2): a(f"v_max3_f32 v8, v8, v{i}, v{i+1}")
        a("v_max_f32 v8, v8, v31")
        self.xreduce("v_max_f32", 8, 9, steps=(32,))
        a(f"ds_write_b32 v7, v8 offset:{MX-QL}\ns_waitcnt lgkmcnt(0)\ns_barrier")
        a(f"ds_read_b128 v[8:11], v6 offset:{MX-QL}\ns_lshl_b32 s64, {U}, 11\nv_add_u32 v104, s64, v104\ns_waitcnt lgkmcnt(0)")
        a(f"v_max3_f32 v8, v8, v9, v10\nv_max_f32 v8, v8, v11\nv_mul_f32 v15, {SC}, v8")
        for gg in range(2):
            for i in range(8): a(f"v_fma_f32 v{16+8*gg+i}, v{16+8*gg+i}, {SC}, -v15")
            for i in range(8): a(f"v_exp_f32 v{16+8*gg+i}, v{16+8*gg+i}")
            for i in range(4): a(f"v_cvt_pk_bf16_f32 v{32+4*gg+i}, v{16+8*gg+2*i}, v{17+8*gg+2*i}")
            a(f"ds_write_b128 v104, {vr(32+4*gg)} offset:{gg*1024}")
        for st in (8, 4, 2):
            for i in range(0, st, 2): a(f"v_pk_add_f32 {vr(16+i,2)}, {vr(16+i,2)}, {vr(16+i+st,2)}")
        a("v_add_f32 v8, v16, v17")
        self.xreduce("v_add_f32", 8, 9, steps=(32,))
        a(f"ds_write_b32 v7, v8 offset:{LS-QL}")
        a.flush(); a.label("L_pv")
        a("s_nop 1")
        a("v_bfe_u32 v21, v0, 2, 2\nv_lshrrev_b32 v22, 5, v0")
        a("v_lshl_add_u32 v23, v22, 2, v21\nv_lshlrev_b32 v23, 10, v23")
        a("v_lshl_or_b32 v24, v21, 2, v22")
        a("v_bfe_u32 v25, v0, 4, 1\nv_bfe_u32 v26, v0, 1, 1\nv_lshl_or_b32 v25, v25, 1, v26\ns_lshl_b32 s64, s3, 2\nv_or_b32 v25, s64, v25")
        a("v_xor_b32 v25, v25, v24\nv_lshl_add_u32 v8, v25, 4, v23\nv_and_b32 v26, 1, v0\nv_lshl_add_u32 v8, v26, 3, v8")
        a(f"v_xor_b32 v9, 32, v8\nv_add_u32 v9, 8192, v9\nv_add_u32 v10, 0x10000, v8\nv_add_u32 v11, 0x10000, v9\nv_add_u32 v12, {PL}, v1")
        a("s_waitcnt lgkmcnt(0)\ns_barrier")
        self.stamp(6)
        def rdp(T):
            b = 32 + 8 * (T % 4)
            a(f"ds_read_b64_tr_b16 {vr(b,2)}, v{8+2*(T>>2)} offset:{(T&3)*16384}")
            a(f"ds_read_b64_tr_b16 {vr(b+2,2)}, v{9+2*(T>>2)} offset:{(T&3)*16384}")
            a(f"ds_read_b128 {vr(b+4)}, v12 offset:{T*1024}")
        for T in range(4): rdp(T)
        skip = a.newlabel("L_skipw")
        a(f"s_cmp_ge_u32 s3, 12\ns_cbranch_scc1 {skip}")
        wload(4, 8)
        a.label(skip)
        for T in range(8):
            b = 32 + 8 * (T % 4)
            a(f"s_waitcnt lgkmcnt({3*min(3,7-T)})")
            a(f"v_mfma_f32_32x32x16_bf16 v[16:31], {vr(b)}, {vr(b+4)}, {'0' if T==0 else 'v[16:31]'}")
            if T + 4 < 8: rdp(T + 4)
        a(f"v_and_b32 v4, 31, v0\nv_mul_u32_u24 v4, {OSTR}, v4\nv_lshrrev_b32 v5, 5, v0\nv_lshl_add_u32 v4, v5, 3, v4\ns_lshl_b32 s64, s3, 6\nv_add_u32 v4, s64, v4")
        a(f"s_mul_i32 s64, s3, {2*OSTR}\nv_add_u32 v5, s64, v1")
        a("v_lshrrev_b32 v3, 4, v0\nv_and_b32 v2, 15, v0\nv_lshlrev_b32 v6, 15, v3\nv_lshl_add_u32 v6, v2, 4, v6")
        a(f"s_lshl_b32 s64, s3, 18\ns_lshl_b32 s65, s2, 8\ns_add_u32 s64, s64, s65\ns_add_u32 s64, s64, {LAT}\ns_add_u32 s65, s64, 131072")
        a("s_barrier")
        for q in range(4):
            a(f"v_cvt_pk_bf16_f32 v{32+2*q}, v{16+4*q}, v{17+4*q}\nv_cvt_pk_bf16_f32 v{33+2*q}, v{18+4*q}, v{19+4*q}")
            a(f"ds_write_b64 v4, {vr(32+2*q,2)} offset:{q*16}")
        a("s_waitcnt lgkmcnt(0)\ns_barrier")
        self.stamp(7)
        a(f"ds_read_b128 v[32:35], v5\nds_read_b128 v[36:39], v5 offset:{OSTR}")
        a(f"v_and_b32 v7, 31, v0\nv_lshlrev_b32 v8, 4, v7\nv_add_u32 v8, {LS}, v8\nds_read_b128 v[40:43], v8")
        a(f"s_waitcnt lgkmcnt(2)\nbuffer_store_dwordx4 v[32:35], v6, {WS}, s64 offen sc1\ns_waitcnt lgkmcnt(1)\nbuffer_store_dwordx4 v[36:39], v6, {WS}, s65 offen sc1")
        skip = a.newlabel("L_skipw")
        a(f"s_lshr_b32 s66, s3, 2\ns_mul_i32 s66, s66, {128*WSTR}\ns_add_u32 s66, s66, {WB}")
        a(f"s_cmp_ge_u32 s3, 12\ns_cbranch_scc1 {skip}")
        a(f"v_mul_u32_u24 v9, {8*WSTR}, v3\nv_lshl_add_u32 v9, v2, 4, v9\ns_mul_i32 s64, {U}, {32*WSTR}\ns_add_u32 s64, s64, s66\nv_add_u32 v9, s64, v9")
        a("s_waitcnt vmcnt(2)")
        for e in range(8): a(f"ds_write_b128 v9, {vr(96+4*e)} offset:{e*WSTR}")
        a.label(skip)
        a(f"s_waitcnt lgkmcnt(0)\nv_pk_add_f32 v[40:41], v[40:41], v[42:43]\nv_mov_b32 v44, v15\nv_mov_b32 v45, {TAG}\nv_mov_b32 v47, {TAG}\nv_add_f32 v46, v40, v41")
        a(f"v_lshlrev_b32 v7, 11, v7\ns_lshl_b32 s64, s2, 4\ns_add_u32 s64, s64, {MLB}")
        a("s_waitcnt vmcnt(0)\ns_barrier")
        skip = a.newlabel("L_skipml")
        a(f"s_cmp_lg_u32 s3, 12\ns_cbranch_scc1 {skip}")
        a(f"s_mov_b32 exec_hi, 0\nbuffer_store_dwordx4 v[44:47], v7, {WS}, s64 offen sc1\ns_mov_b64 exec, -1")
        a.label(skip)
        self.stamp(8)
        skip = a.newlabel("L_skipw")
        a(f"s_cmp_ge_u32 s3, 12\ns_cbranch_scc1 {skip}")
        a(f"v_bfe_u32 v9, v0, 2, 2\nv_lshl_add_u32 v9, v3, 3, v9\nv_mul_u32_u24 v9, {WSTR}, v9\nv_and_b32 v10, 3, v0\nv_lshl_add_u32 v9, v10, 3, v9\ns_lshl_b32 s64, {U}, 6\ns_add_u32 s64, s64, s66\nv_add_u32 v9, s64, v9")
        for ct in range(2):
            for ks in range(4):
                for t in range(2):
                    a(f"ds_read_b64_tr_b16 {vr(96+(ct*4+ks)*4+2*t,2)}, v9 offset:{(32*ks+4*t)*WSTR+32*ct}")
        a.label(skip)
        a(f"s_lshr_b32 s65, s3, 3\ns_lshl_b32 s65, s65, 10\ns_lshl_b32 s64, {H}, 11\ns_add_u32 s64, s64, s65\ns_add_u32 s64, s64, {MLB}")
        a(f"s_lshl_b32 s65, {H}, 2\ns_add_u32 s65, s65, {Q}\ns_lshl_b32 s65, s65, 15\ns_lshl_b32 s66, s3, 11\ns_add_u32 s65, s65, s66\ns_add_u32 s65, s65, {LAT}")
        a("s_and_b32 s66, s3, 7\ns_lshl_b32 s66, s66, 5\nv_lshlrev_b32 v4, 2, v3\nv_add_u32 v4, s66, v4")
        a("s_mul_i32 s66, s3, 272\nv_lshlrev_b32 v5, 4, v2\nv_lshl_add_u32 v5, v3, 2, v5\nv_add_u32 v5, s66, v5")
        a("v_mul_u32_u24 v6, 272, v2\nv_lshl_add_u32 v3, v3, 4, v6")
        a(f"v_mov_b32 v29, {TAG}")
        self.poll([f"buffer_load_dwordx4 v[8:11], v1, {WS}, s64 offen sc1"], [9, 11], sleep=4)
        for i in range(2): a(f"buffer_load_dwordx4 {vr(32+4*i)}, v1, {WS}, s65 offen offset:{i*1024} sc1")
        self.stamp(9)
        self.dpp_reduce("v_max_f32", 12, 8, 4); self.xreduce("v_max_f32", 12, 15)
        a("v_sub_f32 v13, v8, v12\nv_exp_f32 v13, v13\nv_mul_f32 v14, v13, v10")
        self.dpp_reduce("v_add_f32", 14, 14, 4); self.xreduce("v_add_f32", 14, 15)
        a("v_rcp_f32 v14, v14\nv_mul_f32 v13, v13, v14")
        a("ds_bpermute_b32 v8, v4, v13\nds_bpermute_b32 v9, v4, v13 offset:16\ns_waitcnt lgkmcnt(0)")
        for i in range(2):
            a(f"s_waitcnt vmcnt({1-i})")
            for d in range(4):
                a(f"v_lshlrev_b32 v24, 16, v{32+4*i+d}\nv_and_b32 v25, 0xffff0000, v{32+4*i+d}")
                if i == 0: a(f"v_mul_f32 v{16+2*d}, v8, v24\nv_mul_f32 v{17+2*d}, v8, v25")
                else: a(f"v_fmac_f32 v{16+2*d}, v9, v24\nv_fmac_f32 v{17+2*d}, v9, v25")
        for e in range(4): a(f"v_permlane32_swap_b32 v{16+e}, v{20+e}")
        for e in range(4): a(f"v_add_f32 v{16+e}, v{16+e}, v{20+e}")
        for e in range(2): a(f"v_permlane16_swap_b32 v{16+e}, v{18+e}")
        for e in range(2): a(f"v_add_f32 v{16+e}, v{16+e}, v{18+e}")
        a(f"v_cvt_pk_bf16_f32 v16, v16, v17\nds_write_b32 v5, v16 offset:{VEC1}")
        a("v_lshrrev_b32 v7, 5, v0\nv_lshlrev_b32 v6, 10, v7\nv_and_b32 v8, 31, v0\nv_lshl_add_u32 v6, v8, 3, v6")
        a("v_lshlrev_b32 v7, 17, v7\nv_bfe_u32 v8, v0, 4, 1\nv_lshl_add_u32 v7, v8, 12, v7\nv_lshl_add_u32 v7, v2, 3, v7")
        a(f"s_lshl_b32 s67, {Q}, 2\ns_add_u32 s67, s67, {U}\ns_lshl_b32 s67, s67, 6\ns_add_u32 s67, s67, {H}\ns_lshl_b32 s67, s67, 7")
        a(f"s_lshl_b32 s60, {H}, 13\ns_add_u32 s60, s60, {CTXP}")
        a("s_waitcnt lgkmcnt(0)\ns_barrier")
        skip = a.newlabel("L_skipp")
        a(f"s_cmp_ge_u32 s3, 4\ns_cbranch_scc1 {skip}")
        self.proj(VEC1, False, True)
        a(f"s_lshl_b32 s64, {Q}, 11\ns_add_u32 s64, s64, s60\ns_lshl_b32 s65, {U}, 8\ns_add_u32 s64, s64, s65")
        a(f"buffer_store_dwordx2 v[28:29], v6, {WS}, s64 offen sc1")
        a.label(skip)
        self.stamp(10)
        skip = a.newlabel("L_skipp")
        a(f"s_cmp_ge_u32 s3, 8\ns_cbranch_scc1 {skip}")
        a(f"s_lshl_b32 s64, {U}, 11\ns_add_u32 s64, s64, s60\ns_lshr_b32 s65, s3, 2\ns_lshl_b32 s66, s65, 10\ns_add_u32 s64, s64, s66")
        a(f"s_lshl_b32 s65, s65, 3\ns_add_u32 s65, s65, {U}\ns_mul_i32 s65, s65, 272\nv_lshlrev_b32 v5, 2, v0\nv_add_u32 v5, s65, v5")
        self.poll([f"buffer_load_dwordx4 v[8:11], v1, {WS}, s64 offen sc1"], [9, 11], sleep=1)
        a(f"v_cvt_pk_bf16_f32 v8, v8, v10\nds_write_b32 v5, v8 offset:{VEC2}\ns_waitcnt lgkmcnt(0)")
        a.label(skip)
        a("s_barrier")
        skip = a.newlabel("L_skipp")
        a(f"s_lshr_b32 s64, s3, 2\ns_cmp_lg_u32 s64, 1\ns_cbranch_scc1 {skip}")
        self.proj(VEC2, False, False)
        a(f"s_add_u32 s64, s67, {OUTP_B}\nbuffer_store_dwordx2 v[28:29], v7, {WS}, s64 offen sc1")
        a.label(skip)
        skip = a.newlabel("L_skipf")
        a(f"s_cmp_lg_u32 s3, 12\ns_cbranch_scc1 {skip}\ns_cmp_lt_u32 s2, 64\ns_cbranch_scc1 {skip}\ns_sub_u32 s60, s2, 64")
        self.final_stage(OUTP_B, 1, "s60")
        a.label(skip)
        self.stamp(11)
        skip = a.newlabel("L_skipa")
        a(f"s_lshr_b32 s64, s3, 2\ns_cmp_lg_u32 s64, 2\ns_cbranch_scc1 {skip}")
        a(f"v_and_b32 v2, 15, v0\nv_lshlrev_b32 v4, 4, v2\ns_lshl_b32 s64, {H}, 8\ns_add_u32 s64, s64, {MLA}")
        self.poll([f"buffer_load_dwordx4 v[8:11], v4, {WS}, s64 offen sc1"], [9, 11], sleep=8)
        self.dpp_reduce("v_max_f32", 12, 8, 3)
        a("v_sub_f32 v13, v8, v12\nv_exp_f32 v13, v13\nv_mul_f32 v14, v13, v10")
        self.dpp_reduce("v_add_f32", 14, 14, 3)
        a("v_rcp_f32 v14, v14\nv_mul_f32 v13, v13, v14")
        a(f"s_lshl_b32 s64, {U}, 6\ns_add_u32 s64, s64, {WSCR}\nv_lshlrev_b32 v4, 2, v2\nv_add_u32 v4, s64, v4\nds_write_b32 v4, v13")
        a("v_lshrrev_b32 v4, 4, v0\nv_lshlrev_b32 v4, 4, v4\nv_add_u32 v4, s64, v4\nds_read_b128 v[24:27], v4")
        a.label(skip)
        a(f"v_lshlrev_b32 v4, 3, v0\ns_lshl_b32 s64, {H}, 13\ns_lshl_b32 s65, s3, 9\ns_add_u32 s64, s64, s65\ns_add_u32 s64, s64, {OPART}")
        a("s_mul_i32 s65, s3, 272\nv_lshlrev_b32 v5, 2, v0\nv_add_u32 v5, s65, v5")
        self.poll([f"buffer_load_dwordx2 v[8:9], v4, {WS}, s64 offen sc1"], [9], sleep=self.o.get("tailsleep", 1))
        a(f"ds_write_b32 v5, v8 offset:{VEC3}\ns_waitcnt lgkmcnt(0)\ns_barrier")
        self.stamp(12)
        skip = a.newlabel("L_skipp")
        a(f"s_lshr_b32 s64, s3, 2\ns_cmp_lg_u32 s64, 2\ns_cbranch_scc1 {skip}")
        self.proj(VEC3, True, True)
        a(f"s_add_u32 s64, s67, {OUTP_A}\nbuffer_store_dwordx2 v[28:29], v7, {WS}, s64 offen sc1")
        a.label(skip)
        end = a.newlabel("L_nend")
        a(f"s_cmp_lg_u32 s3, 12\ns_cbranch_scc1 {end}\ns_cmp_ge_u32 s2, 64\ns_cbranch_scc1 {end}")
        self.final_stage(OUTP_A, 0, "s2")
        a(f"s_cmp_lg_u32 s2, 0\ns_cbranch_scc1 {end}")
        a(f"s_mov_b64 exec, 1\nv_mov_b32 v3, {TAG}\nv_mov_b32 v4, 0\nbuffer_store_dword v3, v4, {WS}, 0 offen offset:{EPOCH} sc1\ns_mov_b64 exec, -1")
        a.label(end)
        self.finish()

    def role_aatt(self):
        a = self.a; a.flush(); a.label("L_aatt")
        MX, LS, QV, RED = 0, 256, 1024, 2048
        a("s_sub_u32 s61, s2, 128")
        a("v_bfe_u32 v3, v0, 2, 2\nv_lshlrev_b32 v2, 8, v3\nv_lshrrev_b32 v4, 4, v0\nv_lshl_add_u32 v2, v4, 6, v2\nv_and_b32 v5, 3, v0\nv_lshl_add_u32 v2, v5, 4, v2\nv_lshlrev_b32 v1, 4, v0")
        a("s_lshl_b32 s60, s61, 18\ns_lshl_b32 s64, s3, 14\ns_add_u32 s60, s60, s64\ns_add_u32 s65, s60, 4096\ns_add_u32 s68, s60, 8192\ns_add_u32 s67, s60, 12288")
        so = ["s60", "s65", "s68", "s67"]
        a("s_waitcnt lgkmcnt(0)")
        self.epoch()
        self.srd(R1, P_K, 32 << 20); self.srd(R2, P_V, 32 << 20); self.srd(WS, P_WS, WS_BYTES)
        d = self.o.get("kdepth", 0)
        for i in range(16):
            a(f"buffer_load_dwordx4 {vr(64+4*i)}, v2, {R1}, {so[i>>2]} offen offset:{(i&3)*1024} nt")
            if d and i + 1 >= d: a(f"s_waitcnt vmcnt({d-1})")
        a(f"s_bfe_u32 s64, s61, 0x30003\ns_lshl_b32 s64, s64, 2\ns_add_u32 s64, s64, s3\ns_lshl_b32 s64, s64, 13\ns_lshr_b32 s66, s61, 6\ns_lshl_b32 s66, s66, 10\ns_add_u32 s64, s64, s66\ns_add_u32 s64, s64, {QAP}\ns_add_u32 s66, s64, 4096")
        self.tag_ready()
        for v in range(4):
            a(f"s_mov_b32 s{44+2*v}, {hex(0x11111111<<v)}\ns_mov_b32 s{45+2*v}, {hex(0x11111111<<v)}")
        a("s_barrier")
        def v0loads():
            for e in range(8): a(f"buffer_load_dwordx4 {vr(32+4*e)}, v1, {R2}, {so[e>>2]} offen offset:{(e&3)*1024} nt")
        nq, join = a.newlabel("L_nq"), a.newlabel("L_join")
        a(f"s_cmp_ge_u32 s3, 4\ns_cbranch_scc1 {nq}")
        self.gather4(16, only_issue=True)
        v0loads()
        a(f"s_lshl_b32 s69, s3, 8\ns_add_u32 s69, s69, {QV}\nv_lshlrev_b32 v6, 2, v0\nv_add_u32 v6, s69, v6")
        self.gather4(16, first_wait=8, issued=True, sleep=8)
        a(f"ds_write_b32 v6, v16\ns_waitcnt lgkmcnt(0)\ns_branch {join}")
        a.label(nq)
        v0loads()
        a.label(join)
        self.stamp(1)
        a(f"s_barrier\nds_read_b128 v[8:11], v2 offset:{QV}\ns_waitcnt vmcnt(8) lgkmcnt(0)")
        self.stamp(2)
        for i in range(16): a(f"v_mfma_f32_16x16x32_bf16 {vr(64+4*i)}, {vr(64+4*i)}, v[8:11], 0")
        for g in range(4):
            self.diag_sum([(64 + 4 * i, 16 + i) for i in range(4*g, 4*g+4)])
            for i in range(4*g, 4*g+4):
                if i < 8: a(f"buffer_load_dwordx4 {vr(64+4*i)}, v1, {R2}, {so[2+(i>>2)]} offen offset:{(i&3)*1024} nt")
        a("v_max3_f32 v8, v16, v17, v18")
        for i in range(19, 31, 2): a(f"v_max3_f32 v8, v8, v{i}, v{i+1}")
        a("v_max_f32 v8, v8, v31")
        self.xreduce("v_max_f32", 8, 9)
        a(f"v_lshlrev_b32 v6, 6, v3\ns_lshl_b32 s64, s3, 2\nv_add_u32 v7, s64, v6\nds_write_b32 v7, v8 offset:{MX}\ns_waitcnt lgkmcnt(0)\ns_barrier")
        for q in range(4): a(f"ds_read_b128 {vr(96+4*q)}, v6 offset:{MX+16*q}")
        a("s_waitcnt lgkmcnt(0)\nv_max3_f32 v8, v96, v97, v98")
        for i in range(99, 111, 2): a(f"v_max3_f32 v8, v8, v{i}, v{i+1}")
        a(f"v_max_f32 v8, v8, v111\nv_mul_f32 v4, {SC}, v8")
        for i in range(16): a(f"v_fma_f32 v{16+i}, v{16+i}, {SC}, -v4")
        for i in range(16): a(f"v_exp_f32 v{16+i}, v{16+i}")
        for i in range(8): a(f"v_cvt_pk_bf16_f32 v{8+i}, v{16+2*i}, v{17+2*i}")
        for st in (8, 4, 2):
            for i in range(0, st, 2): a(f"v_pk_add_f32 {vr(16+i,2)}, {vr(16+i,2)}, {vr(16+i+st,2)}")
        a("v_add_f32 v16, v16, v17")
        self.xreduce("v_add_f32", 16, 17)
        a(f"ds_write_b32 v7, v16 offset:{LS}")
        for blk in range(2):
            for v in range(4):
                for t in range(4): a(f"v_cndmask_b32 v{96+16*blk+4*v+t}, 0, v{8+4*blk+t}, s[{44+2*v}:{45+2*v}]")
        a("s_waitcnt lgkmcnt(0)\ns_barrier")
        self.stamp(3)
        skip = a.newlabel("L_skipml")
        a(f"s_cmp_lg_u32 s3, 0\ns_cbranch_scc1 {skip}")
        for q in range(4): a(f"ds_read_b128 {vr(16+4*q)}, v6 offset:{LS+16*q}")
        a(f"s_bfe_u32 s64, s61, 0x30003\ns_lshl_b32 s64, s64, 10\ns_lshr_b32 s68, s61, 6\ns_lshl_b32 s68, s68, 3\ns_and_b32 s69, s61, 7\ns_add_u32 s68, s68, s69\ns_lshl_b32 s68, s68, 4\ns_add_u32 s64, s64, s68\ns_add_u32 s64, s64, {MLA}")
        a("v_lshlrev_b32 v5, 8, v3\ns_waitcnt lgkmcnt(0)")
        for st in (8, 4, 2):
            for i in range(0, st, 2): a(f"v_pk_add_f32 {vr(16+i,2)}, {vr(16+i,2)}, {vr(16+i+st,2)}")
        a(f"v_add_f32 v22, v16, v17\nv_mov_b32 v20, v4\nv_mov_b32 v21, {TAG}\nv_mov_b32 v23, {TAG}")
        a(f"s_mov_b64 exec, 0x1111\nbuffer_store_dwordx4 v[20:23], v5, {WS}, s64 offen sc1\ns_mov_b64 exec, -1\ns_nop 1")
        a.label(skip)
        a(f"v_lshlrev_b32 v5, 5, v0\ns_lshl_b32 s64, s3, 11\ns_add_u32 s64, s64, {RED}\nv_add_u32 v5, s64, v5")
        a(f"v_lshlrev_b32 v6, 3, v0\ns_lshl_b32 s64, s3, 9\ns_add_u32 s64, s64, {RED}\nv_add_u32 v7, s64, v6")
        a(f"s_bfe_u32 s64, s61, 0x30003\ns_lshl_b32 s64, s64, 2\ns_add_u32 s64, s64, s3\ns_lshl_b32 s64, s64, 13\ns_lshr_b32 s68, s61, 6\ns_lshl_b32 s68, s68, 3\ns_and_b32 s69, s61, 7\ns_add_u32 s68, s68, s69\ns_lshl_b32 s68, s68, 9\ns_add_u32 s64, s64, s68\ns_add_u32 s64, s64, {OPART}")
        for blk in range(2):
            a(f"s_waitcnt vmcnt({8 if blk==0 else 0})")
            if blk == 1: self.stamp(4)
            W = 32 + 32 * blk
            for ep in range(8):
                t = 16 + 4 * (ep % 4)
                self.perm_frag(W, ep, t)
                D = 8 + 4 * (ep >> 2)
                first = (blk == 0 and (ep & 3) == 0)
                a(f"v_mfma_f32_16x16x32_bf16 {vr(D)}, {vr(96+16*blk+4*(ep&3))}, {vr(t)}, {'0' if first else vr(D)}")
        a("ds_write_b128 v5, v[8:11]\nds_write_b128 v5, v[12:15] offset:16\ns_waitcnt lgkmcnt(0)\ns_barrier")
        end = a.newlabel("L_aend")
        a(f"s_cmp_ge_u32 s3, 4\ns_cbranch_scc1 {end}")
        for w in range(16): a(f"ds_read_b64 {vr(32+2*w,2)}, v7 offset:{w*2048}")
        a(f"v_mov_b32 v9, {TAG}\ns_waitcnt lgkmcnt(0)")
        for st in (16, 8, 4, 2):
            for i in range(0, st, 2): a(f"v_pk_add_f32 {vr(32+i,2)}, {vr(32+i,2)}, {vr(32+i+st,2)}")
        a(f"v_cvt_pk_bf16_f32 v8, v32, v33\nbuffer_store_dwordx2 v[8:9], v6, {WS}, s64 offen sc1")
        a.label(end)
        self.finish()

    def build(self):
        a = self.a
        hdr = open("cdna_kernels/" + NAME + ".s.ref").read().split("; @launch")[0]
        a.raw(hdr.rstrip("\n"))
        a.raw("; @launch grid=(256,1,1) block=(1024,1,1) lds=163840")
        a.raw('.amdgcn_target "amdgcn-amd-amdhsa--gfx950"\n.text\n.globl %s_kernel\n.p2align 8\n.type %s_kernel,@function\n%s_kernel:' % (NAME, NAME, NAME))
        if self.stamps: a("s_memrealtime s[72:73]")
        a("s_cmp_ge_u32 s2, 256\ns_cbranch_scc1 L_exit")
        a("s_load_dwordx16 s[4:19], s[0:1], 0\ns_load_dwordx8 s[20:27], s[0:1], 64\ns_load_dwordx4 s[28:31], s[0:1], 96")
        a("v_lshrrev_b32 v1, 6, v0\nv_and_b32 v0, 63, v0\nv_readfirstlane_b32 s3, v1")
        a(f"s_mov_b32 {SELLO}, 0x05040100\ns_mov_b32 {SELHI}, 0x07060302\ns_mov_b32 {SC}, {hex(SCALE_BITS)}")
        self.stamp_init()
        a("s_cmp_lt_u32 s2, 128\ns_cbranch_scc1 L_n\ns_branch L_aatt")
        a.label("L_exit"); a("s_endpgm")
        self.role_aatt(); self.role_n()
        a.raw('.section .rodata,"a"\n.p2align 6\n.amdhsa_kernel %s_kernel' % NAME)
        a.raw("  .amdhsa_next_free_vgpr 128\n  .amdhsa_next_free_sgpr 100\n  .amdhsa_accum_offset 128\n  .amdhsa_group_segment_fixed_size 0\n  .amdhsa_kernarg_size 112\n  .amdhsa_user_sgpr_count 2\n  .amdhsa_user_sgpr_kernarg_segment_ptr 1\n  .amdhsa_system_sgpr_workgroup_id_x 1\n.end_amdhsa_kernel")
        return a.text()

if __name__ == "__main__":
    out = sys.argv[1]; o = {}
    for x in sys.argv[2:]:
        if x == "--stamps": o["stamps"] = True
        else:
            k, v = x.split("="); o[k] = int(v)
    open(out, "w").write(Gen(**o).build())
```

```python
import sys, math, struct
sys.path.insert(0, "gen")
from asmlib import Asm

NAME = "concat_heads__gqa_block_cached__compressed_kv_cla__decode"
EPOCH = 0x0
QABS, MLA, MLB = 0x20000, 0x40000, 0x50000
QAP, QBP, CTXP, OPART, OUTP_A, OUTP_B, LAT = 0x80000, 0xC0000, 0x100000, 0x140000, 0x180000, 0x1C0000, 0x400000
STAMP = 0x1000000
WS_BYTES = 0x10000000
SPIN = 20000
DPP = "row_mask:0xf bank_mask:0xf"
SCALE = math.log2(math.e) / math.sqrt(128.0)
SCALE_BITS = struct.unpack("<I", struct.pack("<f", SCALE))[0]

P_AX, P_K, P_V, P_WQ, P_WO, P_BX, P_C, P_BWQ, P_UK, P_UV, P_BWO, P_OUT, P_DBG, P_WS = 4, 6, 8, 10, 12, 14, 16, 18, 20, 22, 24, 26, 28, 30
WS, R1, R2, R3, R4, R5 = "s[32:35]", "s[36:39]", "s[40:43]", "s[44:47]", "s[48:51]", "s[52:55]"
TAG, CNT, SELLO, SELHI, SC = "s56", "s57", "s58", "s59", "s71"
H, Q, U = "s61", "s68", "s69"

def vr(a, n=4): return f"v[{a}:{a+n-1}]"
def fsw(i): return ((i & 3) << 2) | ((i >> 2) & 3)

class Gen:
    def __init__(self, stamps=False, **o):
        self.a = Asm(); self.stamps = stamps; self.o = o
    def srd(self, name, ptr, nbytes):
        b = int(name[2:].split(":")[0])
        self.a(f"s_mov_b32 s{b}, s{ptr}\ns_mov_b32 s{b+1}, s{ptr+1}\ns_mov_b32 s{b+2}, {hex(nbytes)}\ns_mov_b32 s{b+3}, 0x20000")
    def stamp(self, i):
        if self.stamps:
            self.a(f"s_memrealtime s[{72+2*i}:{73+2*i}]\ns_waitcnt lgkmcnt(0)")
    def stamp_init(self):
        if self.stamps:
            for i in range(2, 28): self.a(f"s_mov_b32 s{72+i}, 0")
    def finish(self):
        a = self.a
        if self.stamps:
            self.stamp(13)
            a("s_mov_b64 exec, 1")
            a(f"s_lshl_b32 s60, s2, 4\ns_add_u32 s60, s60, s3\ns_lshl_b32 s60, s60, 7\ns_add_u32 s60, s60, {STAMP}")
            a("v_mov_b32 v1, 0")
            for q in range(7):
                for i in range(4): a(f"v_mov_b32 v{4+i}, s{72+4*q+i}")
                a(f"buffer_store_dwordx4 v[4:7], v1, {WS}, s60 offen offset:{16*q}")
                a("s_nop 1")
            a("s_waitcnt vmcnt(0)")
        if self.o.get("dbgspan"):
            a("s_cmp_lg_u32 s3, 12\ns_cbranch_scc1 L_exit\ns_cmp_ge_u32 s2, 64\ns_cbranch_scc1 L_exit")
            a("s_memrealtime s[74:75]")
            self.srd(R5, P_DBG, 256)
            a("s_waitcnt lgkmcnt(0)\ns_mov_b64 exec, 1\ns_not_b32 s72, s72\nv_mov_b32 v1, 0\nv_mov_b32 v4, s74\nv_mov_b32 v5, s72")
            a(f"buffer_atomic_umax v4, v1, {R5}, 0 offen sc1\nbuffer_atomic_umax v5, v1, {R5}, 0 offen offset:4 sc1\ns_waitcnt vmcnt(0)")
        a("s_endpgm")
    def epoch(self):
        self.a(f"s_load_dword {TAG}, s[{P_WS}:{P_WS+1}], {EPOCH}")
    def tag_ready(self):
        self.a(f"s_waitcnt lgkmcnt(0)\ns_mul_i32 {TAG}, {TAG}, 1664525\ns_add_u32 {TAG}, {TAG}, 1013904223")
    def poll(self, loads, tagregs, first_wait=None, issued=False, sleep=2):
        a = self.a
        L, OK, CHK = a.newlabel("L_poll"), a.newlabel("L_ok"), a.newlabel("L_chk")
        a(f"s_mov_b32 {CNT}, {SPIN}")
        if issued:
            a(f"s_waitcnt vmcnt({first_wait})\ns_branch {CHK}")
        a.label(L)
        for l in loads: a(l)
        a("s_waitcnt vmcnt(0)")
        a.label(CHK)
        for i, t in enumerate(tagregs):
            if i == 0: a(f"v_cmp_ne_u32 vcc, {TAG}, v{t}")
            else: a(f"v_cmp_ne_u32 s[62:63], {TAG}, v{t}\ns_or_b64 vcc, vcc, s[62:63]")
        a(f"s_cmp_eq_u64 vcc, 0\ns_cbranch_scc1 {OK}")
        if sleep: a(f"s_sleep {sleep}")
        a(f"s_sub_u32 {CNT}, {CNT}, 1\ns_cmp_lg_u32 {CNT}, 0\ns_cbranch_scc1 {L}")
        a.label(OK)
    def lds_signal(self, addr):
        self.a(f"s_waitcnt lgkmcnt(0)\ns_mov_b64 exec, 1\nv_mov_b32 v6, {addr}\nv_mov_b32 v7, 1\nds_add_u32 v6, v7\ns_mov_b64 exec, -1")
    def lds_wait(self, addr, n):
        a = self.a
        L, OK = a.newlabel("L_lw"), a.newlabel("L_lok")
        a(f"s_mov_b32 {CNT}, {SPIN*50}\nv_mov_b32 v6, {addr}")
        a.label(L)
        a(f"ds_read_b32 v7, v6\ns_waitcnt lgkmcnt(0)\nv_readfirstlane_b32 s62, v7\ns_cmp_ge_u32 s62, {n}\ns_cbranch_scc1 {OK}")
        a(f"s_sleep 1\ns_sub_u32 {CNT}, {CNT}, 1\ns_cmp_lg_u32 {CNT}, 0\ns_cbranch_scc1 {L}")
        a.label(OK)
    def perm_frag(self, W, ep, dst):
        for t in range(4):
            self.a(f"v_perm_b32 v{dst+t}, v{W+4*(2*t+1)+(ep>>1)}, v{W+4*(2*t)+(ep>>1)}, {SELHI if ep&1 else SELLO}")
    def diag_sum(self, lst):
        a = self.a
        for D, dst in lst: a(f"v_mov_b32_dpp v{dst}, v{D} quad_perm:[0,0,0,0] {DPP}")
        for i in (1, 2, 3):
            for D, dst in lst: a(f"v_add_f32_dpp v{dst}, v{D+i}, v{dst} quad_perm:[{i},{i},{i},{i}] {DPP}")
    def xreduce(self, op, x, t, steps=(32, 16)):
        for s in steps:
            self.a(f"v_mov_b32 v{t}, v{x}\nv_permlane{s}_swap_b32 v{x}, v{t}\n{op} v{x}, v{x}, v{t}")
    def dpp_reduce(self, op, x, src, n):
        pats = ["quad_perm:[1,0,3,2]", "quad_perm:[2,3,0,1]", "row_half_mirror", "row_mirror"][:n]
        for i, p in enumerate(pats):
            s = src if i == 0 else x
            self.a(f"{op}_dpp v{x}, v{s}, v{s} {p} {DPP}")

    QL = 131072
    def proj(self, vec, weights, add):
        a = self.a
        for ks in range(4): a(f"ds_read_b128 {vr(32+4*ks)}, v3 offset:{vec+ks*64}")
        for ks in range(4):
            a(f"s_waitcnt lgkmcnt({3-ks})")
            for ct in range(2):
                a(f"v_mfma_f32_16x16x32_bf16 {vr(16+4*ct)}, {vr(32+4*ks)}, {vr(96+(ct*4+ks)*4)}, {'0' if ks==0 else vr(16+4*ct)}")
        if weights:
            for ct in range(2): a(f"v_mul_f32 v{12+ct}, v24, v{16+4*ct}")
            for r in range(1, 4):
                for ct in range(2): a(f"v_fmac_f32 v{12+ct}, v{24+r}, v{16+4*ct+r}")
        else:
            for ct in range(2): a(f"v_pk_add_f32 {vr(16+4*ct,2)}, {vr(16+4*ct,2)}, {vr(18+4*ct,2)}")
            for ct in range(2): a(f"v_add_f32 v{12+ct}, v{16+4*ct}, v{17+4*ct}")
        a("v_permlane16_swap_b32 v12, v13")
        a("v_add_f32 v28, v12, v13" if add else "v_mov_b32 v28, v12")
    def front_q(self, xptr, wptr, red, flag, dst):
        a = self.a
        a("v_lshrrev_b32 v3, 4, v0\nv_lshlrev_b32 v4, 16, v3\nv_and_b32 v2, 15, v0\nv_lshl_add_u32 v4, v2, 4, v4")
        a("v_and_b32 v5, 1, v0\nv_lshlrev_b32 v5, 10, v5\nv_lshl_add_u32 v5, v3, 4, v5")
        a(f"s_lshl_b32 s60, {Q}, 2\ns_add_u32 s60, s60, {U}\ns_lshl_b32 s65, s60, 6\ns_lshl_b32 s60, s60, 18\ns_lshl_b32 s64, {H}, 8\ns_add_u32 s60, s60, s64")
        a("s_waitcnt lgkmcnt(0)")
        self.epoch()
        self.srd(R1, wptr, 4 << 20); self.srd(R2, xptr, 2048); self.srd(WS, P_WS, WS_BYTES)
        a(f"buffer_load_dwordx4 v[8:11], v5, {R2}, s65 offen")
        for e in range(8): a(f"s_add_u32 s64, s60, {e*8192}\nbuffer_load_dwordx4 {vr(32+4*e)}, v4, {R1}, s64 offen nt")
        self.tag_ready()
        a("s_barrier")
        a(f"v_lshlrev_b32 v5, 3, v2\ns_lshl_b32 s64, {U}, 10\ns_add_u32 s64, s64, {red}\nv_add_u32 v5, s64, v5")
        a("s_waitcnt vmcnt(0)")
        self.stamp(1)
        for ep in range(8):
            t = 12 + 4 * (ep % 4)
            self.perm_frag(32, ep, t)
            a(f"v_mfma_f32_16x16x32_bf16 {vr(64+4*ep)}, v[8:11], {vr(t)}, 0")
        a("s_mov_b64 exec, 0xffff")
        for e in range(8): a(f"ds_write_b64 v5, {vr(64+4*e,2)} offset:{e*128}")
        a("s_mov_b64 exec, -1")
        self.lds_signal(flag)
        skip = a.newlabel("L_skipred")
        a(f"s_cmp_ge_u32 {U}, 2\ns_cbranch_scc1 {skip}")
        a(f"v_lshlrev_b32 v4, 8, v3\nv_lshl_add_u32 v4, v2, 3, v4\ns_lshl_b32 s64, {U}, 2\ns_add_u32 s64, s64, {red}\nv_add_u32 v4, s64, v4\nv_add_u32 v5, 128, v4")
        a(f"v_lshlrev_b32 v12, 6, v2\nv_lshl_add_u32 v12, v3, 4, v12\ns_lshl_b32 s64, {H}, 13\ns_lshl_b32 s65, {U}, 10\ns_add_u32 s64, s64, s65\ns_add_u32 s64, s64, {dst}\ns_lshl_b32 s65, {Q}, 11\ns_add_u32 s65, s65, s64")
        a(f"v_mov_b32 v9, {TAG}\nv_mov_b32 v11, {TAG}")
        self.lds_wait(flag, 4)
        a("ds_read2st64_b32 v[16:17], v4 offset0:0 offset1:4\nds_read2st64_b32 v[18:19], v4 offset0:8 offset1:12")
        a("ds_read2st64_b32 v[20:21], v5 offset0:0 offset1:4\nds_read2st64_b32 v[22:23], v5 offset0:8 offset1:12")
        a("s_waitcnt lgkmcnt(0)\nv_pk_add_f32 v[16:17], v[16:17], v[18:19]\nv_pk_add_f32 v[20:21], v[20:21], v[22:23]\nv_add_f32 v8, v16, v17\nv_add_f32 v10, v20, v21")
        a(f"buffer_store_dwordx4 v[8:11], v12, {WS}, s65 offen sc1")
        self.stamp(2)
        return skip
    def gather4(self, base, first_wait=None, issued=False, sleep=2, only_issue=False):
        a = self.a
        loads = [f"buffer_load_dwordx4 {vr(base+4*i)}, v1, {WS}, {'s64' if i<2 else 's66'} offen offset:{(i&1)*2048} sc1" for i in range(4)]
        if only_issue:
            for l in loads: a(l)
            return
        self.poll(loads, [base + 4 * i + k for i in range(4) for k in (1, 3)], first_wait=first_wait, issued=issued, sleep=sleep)
        a(f"v_add_f32 v{base}, v{base}, v{base+4}\nv_add_f32 v{base+2}, v{base+2}, v{base+6}\nv_add_f32 v{base+8}, v{base+8}, v{base+12}\nv_add_f32 v{base+10}, v{base+10}, v{base+14}")
        a(f"v_add_f32 v{base}, v{base}, v{base+8}\nv_add_f32 v{base+2}, v{base+2}, v{base+10}\nv_cvt_pk_bf16_f32 v{base}, v{base}, v{base+2}")
    def final_stage(self, outp, part, sl):
        a = self.a
        self.srd(R1, P_OUT, 4096)
        a(f"s_lshl_b32 s64, {sl}, 12\ns_add_u32 s64, s64, {outp}")
        loads = [f"buffer_load_dwordx4 {vr(32+4*i)}, v1, {WS}, s64 offen offset:{i*1024} sc1" for i in range(4)]
        a(f"s_lshr_b32 s66, {sl}, 5\ns_lshl_b32 s66, s66, 11\ns_and_b32 s65, {sl}, 31\ns_lshl_b32 s65, s65, 5\ns_add_u32 s66, s66, s65\ns_add_u32 s66, s66, {part*1024}")
        a("v_lshlrev_b32 v2, 2, v0")
        self.poll(loads, [32 + 4 * i + k for i in range(4) for k in (1, 3)], sleep=self.o.get("tailsleep", 1))
        for st in (8, 4):
            for i in range(0, st, 2): a(f"v_add_f32 v{32+i}, v{32+i}, v{32+i+st}")
        a(f"v_add_f32_dpp v32, v32, v32 row_ror:8 {DPP}\nv_add_f32_dpp v34, v34, v34 row_ror:8 {DPP}")
        for s in (32, 16):
            a(f"v_mov_b32 v33, v32\nv_mov_b32 v35, v34\nv_permlane{s}_swap_b32 v32, v33\nv_permlane{s}_swap_b32 v34, v35\nv_add_f32 v32, v32, v33\nv_add_f32 v34, v34, v35")
        a("v_cvt_pk_bf16_f32 v32, v32, v34\ns_mov_b64 exec, 0xff")
        a(f"buffer_store_dword v32, v2, {R1}, s66 offen\ns_mov_b64 exec, -1")

    def role_n(self):
        a = self.a; a.flush(); a.label("L_n")
        QL = self.QL
        REDB, REDA, QV, F1, F2, F3 = QL, QL + 4096, QL + 8192, QL + 8704, QL + 8708, QL + 8712
        PL, MX, LS, WSCR = QL, QL + 24576, QL + 25600, QL + 30720
        WB, WSTR, OSTR = 40960, 288, 1040
        VEC1, VEC2, VEC3 = 0, 8192, 16384
        a(f"s_and_b32 {H}, s2, 31\ns_lshr_b32 {Q}, s2, 5\ns_and_b32 {U}, s3, 3\nv_lshlrev_b32 v1, 4, v0")
        a("s_lshr_b32 s64, s3, 2\ns_cmp_eq_u32 s64, 1\ns_cbranch_scc1 L_g1\ns_cmp_eq_u32 s64, 2\ns_cbranch_scc1 L_g2\ns_cmp_eq_u32 s64, 3\ns_cbranch_scc1 L_g3")
        a(f"v_mov_b32 v6, {F1}\nv_mov_b32 v8, 0\nv_mov_b32 v9, 0\nv_mov_b32 v10, 0\nv_mov_b32 v11, 0\nds_write_b128 v6, v[8:11]")
        skip = self.front_q(P_BX, P_BWQ, REDB, F1, QBP)
        a("s_add_u32 s66, s64, 4096")
        a(f"s_lshl_b32 s65, {U}, 8\ns_add_u32 s65, s65, {QV}\nv_lshlrev_b32 v4, 2, v0\nv_add_u32 v4, s65, v4")
        self.gather4(16, sleep=1)
        a("ds_write_b32 v4, v16")
        self.lds_signal(F2)
        self.stamp(3)
        a.label(skip)
        self.srd(R3, P_UV, 4 << 20)
        a(f"s_lshl_b32 s67, {Q}, 2\ns_add_u32 s67, s67, {U}\ns_lshl_b32 s67, s67, 18\ns_lshl_b32 s64, {H}, 8\ns_add_u32 s67, s67, s64\ns_mov_b32 s70, 8192")
        a("s_branch L_qpoll")
        a.flush(); a.label("L_g1")
        a("v_bfe_u32 v4, v0, 2, 2\nv_lshlrev_b32 v4, 16, v4\nv_lshrrev_b32 v3, 4, v0\nv_lshl_add_u32 v4, v3, 6, v4\nv_and_b32 v2, 3, v0\nv_lshl_add_u32 v4, v2, 4, v4")
        a(f"s_lshl_b32 s60, {Q}, 2\ns_add_u32 s60, s60, {U}\ns_lshl_b32 s65, s60, 12\ns_lshl_b32 s60, s60, 18\ns_lshl_b32 s64, {H}, 8\ns_add_u32 s60, s60, s64")
        a("s_waitcnt lgkmcnt(0)")
        self.epoch()
        self.srd(R1, P_UK, 4 << 20); self.srd(WS, P_WS, WS_BYTES)
        for i in range(8): a(f"s_add_u32 s64, s60, {i*8192}\nbuffer_load_dwordx4 {vr(64+4*i)}, v4, {R1}, s64 offen nt")
        self.tag_ready()
        a("s_barrier")
        a(f"v_bfe_u32 v5, v0, 2, 1\nv_lshlrev_b32 v4, 8, v5\nv_lshl_add_u32 v4, v3, 6, v4\nv_lshl_add_u32 v4, v2, 4, v4\nv_add_u32 v4, {QV}, v4")
        a("v_lshlrev_b32 v5, 16, v5\nv_lshl_add_u32 v5, v3, 10, v5\nv_and_b32 v2, 1, v0\nv_lshl_add_u32 v5, v2, 4, v5\nv_cmp_eq_u32 s[66:67], 1, v2")
        a(f"s_lshl_b32 s64, {H}, 5\ns_add_u32 s65, s65, s64\ns_add_u32 s65, s65, {QABS}")
        a(f"v_mov_b32 v25, {TAG}\nv_mov_b32 v27, {TAG}\ns_waitcnt vmcnt(0)")
        self.stamp(1)
        self.lds_wait(F2, 2)
        a("ds_read_b128 v[8:11], v4\ns_waitcnt lgkmcnt(0)")
        for i in range(8): a(f"v_mfma_f32_16x16x32_bf16 {vr(64+4*i)}, {vr(64+4*i)}, v[8:11], 0")
        for g in range(2): self.diag_sum([(64 + 4 * i, 12 + i) for i in range(4*g, 4*g+4)])
        for i in range(4): a(f"v_cvt_pk_bf16_f32 v{20+i}, v{12+2*i}, v{13+2*i}")
        a("v_cndmask_b32 v24, v20, v22, s[66:67]\nv_cndmask_b32 v26, v21, v23, s[66:67]")
        a(f"s_mov_b32 exec_lo, 0x00330033\ns_mov_b32 exec_hi, 0x00330033\nbuffer_store_dwordx4 v[24:27], v5, {WS}, s65 offen sc1\ns_mov_b64 exec, -1")
        self.stamp(3)
        self.srd(R3, P_BWO, 4 << 20)
        a(f"s_lshl_b32 s67, {H}, 17\ns_lshl_b32 s64, {U}, 15\ns_add_u32 s67, s67, s64\ns_lshl_b32 s64, {Q}, 8\ns_add_u32 s67, s67, s64\ns_mov_b32 s70, 1024")
        a.flush(); a.label("L_qpoll")
        a(f"s_lshr_b32 s64, s2, 6\ns_lshl_b32 s64, s64, 16\ns_lshl_b32 s65, s3, 13\ns_add_u32 s64, s64, s65\ns_add_u32 s64, s64, {QABS}\ns_add_u32 s65, s64, 4096")
        loads = [f"buffer_load_dwordx4 {vr(32+4*q)}, v1, {WS}, s{64+(q>>2)} offen offset:{(q&3)*1024} sc1" for q in range(8)]
        self.poll(loads[7:], [61, 63], sleep=4)
        self.poll(loads, [32 + 4 * q + k for q in range(8) for k in (1, 3)], sleep=4)
        a(f"s_lshl_b32 s65, s3, 12\ns_add_u32 s65, s65, {QL}\nv_lshlrev_b32 v8, 3, v0\nv_add_u32 v8, s65, v8\nv_add_u32 v9, 1024, v8\nv_add_u32 v10, 2048, v8\nv_add_u32 v11, 3072, v8")
        self.stamp(4)
        a("s_barrier")
        for q in range(8): a(f"ds_write2_b32 v{8+(q>>1)}, v{32+4*q}, v{34+4*q} offset0:{(q&1)*128} offset1:{(q&1)*128+1}")
        a("s_waitcnt lgkmcnt(0)\ns_branch L_b1")
        a.flush(); a.label("L_g2")
        skip = self.front_q(P_AX, P_WQ, REDA, F3, QAP)
        a.label(skip)
        self.srd(R3, P_WO, 4 << 20)
        a(f"s_lshl_b32 s67, {H}, 17\ns_lshl_b32 s64, {U}, 15\ns_add_u32 s67, s67, s64\ns_lshl_b32 s64, {Q}, 8\ns_add_u32 s67, s67, s64\ns_mov_b32 s70, 1024")
        a("s_waitcnt lgkmcnt(0)\ns_barrier")
        a.flush(); a.label("L_b1")
        a("s_barrier")
        a("v_lshrrev_b32 v3, 4, v0\nv_and_b32 v2, 15, v0\ns_lshl_b32 s64, s70, 3\nv_mul_lo_u32 v5, v3, s64\nv_lshl_add_u32 v5, v2, 4, v5")
        def wload(e0, e1):
            for e in range(e0, e1):
                a(f"s_mul_i32 s64, s70, {e}\ns_add_u32 s64, s64, s67\nbuffer_load_dwordx4 {vr(96+4*e)}, v5, {R3}, s64 offen nt")
        wload(0, 4)
        a("s_barrier\ns_barrier")
        a("s_branch L_pv")
        a.flush(); a.label("L_g3")
        a(f"s_lshl_b32 s60, s2, 17\ns_lshl_b32 s66, {U}, 15\ns_add_u32 s60, s60, s66")
        a("s_waitcnt lgkmcnt(0)")
        self.epoch()
        self.srd(R1, P_C, 16 << 20); self.srd(WS, P_WS, WS_BYTES); self.srd(R3, P_WO, 4 << 20)
        a("s_barrier")
        cd = self.o.get("cdepth", 0)
        for i in range(32):
            a(f"v_xor_b32 v{4+(i&1)}, {fsw(i&15)*16}, v1\ns_add_u32 m0, s66, {i*1024}\ns_add_u32 s64, s60, {i*1024}\nbuffer_load_dwordx4 v{4+(i&1)}, {R1}, s64 offen nt lds")
            if cd and i + 1 >= cd: a(f"s_waitcnt vmcnt({cd-1})")
        self.tag_ready()
        a("v_and_b32 v2, 31, v0\nv_lshrrev_b32 v3, 5, v0\nv_and_b32 v4, 3, v0\nv_lshlrev_b32 v4, 2, v4\nv_bfe_u32 v5, v0, 2, 2\nv_or_b32 v4, v4, v5\nv_xor_b32 v4, v4, v3")
        a("v_lshlrev_b32 v4, 4, v4\nv_lshl_add_u32 v4, v2, 10, v4\nv_add_u32 v96, s66, v4")
        for jj in range(1, 8): a(f"v_xor_b32 v{96+jj}, {jj*32}, v96")
        a(f"v_add_u32 v104, {QL}, v1")
        a("s_waitcnt vmcnt(0)")
        self.stamp(1)
        a("s_barrier\ns_barrier")
        self.stamp(5)
        NF = 7
        def rd(j):
            b = 32 + 8 * (j % 8)
            a(f"ds_read_b128 {vr(b)}, v{96+(j&7)} offset:{(j>>3)*256}\nds_read_b128 {vr(b+4)}, v104 offset:{j*1024}")
        for j in range(NF): rd(j)
        for j in range(32):
            b = 32 + 8 * (j % 8)
            a(f"s_waitcnt lgkmcnt({2*min(NF-1, 31-j)})")
            a(f"v_mfma_f32_32x32x16_bf16 v[16:31], {vr(b)}, {vr(b+4)}, {'0' if j==0 else 'v[16:31]'}")
            if j + NF < 32: rd(j + NF)
        a("s_barrier")
        a(f"v_lshlrev_b32 v6, 4, v2\nv_add_u32 v6, {QL}, v6\ns_lshl_b32 s64, {U}, 2\nv_add_u32 v7, s64, v6")
        a("v_max3_f32 v8, v16, v17, v18")
        for i in range(19, 31, 2): a(f"v_max3_f32 v8, v8, v{i}, v{i+1}")
        a("v_max_f32 v8, v8, v31")
        self.xreduce("v_max_f32", 8, 9, steps=(32,))
        a(f"ds_write_b32 v7, v8 offset:{MX-QL}\ns_waitcnt lgkmcnt(0)\ns_barrier")
        a(f"ds_read_b128 v[8:11], v6 offset:{MX-QL}\ns_lshl_b32 s64, {U}, 11\nv_add_u32 v104, s64, v104\ns_waitcnt lgkmcnt(0)")
        a(f"v_max3_f32 v8, v8, v9, v10\nv_max_f32 v8, v8, v11\nv_mul_f32 v15, {SC}, v8")
        for gg in range(2):
            for i in range(8): a(f"v_fma_f32 v{16+8*gg+i}, v{16+8*gg+i}, {SC}, -v15")
            for i in range(8): a(f"v_exp_f32 v{16+8*gg+i}, v{16+8*gg+i}")
            for i in range(4): a(f"v_cvt_pk_bf16_f32 v{32+4*gg+i}, v{16+8*gg+2*i}, v{17+8*gg+2*i}")
            a(f"ds_write_b128 v104, {vr(32+4*gg)} offset:{gg*1024}")
        for st in (8, 4, 2):
            for i in range(0, st, 2): a(f"v_pk_add_f32 {vr(16+i,2)}, {vr(16+i,2)}, {vr(16+i+st,2)}")
        a("v_add_f32 v8, v16, v17")
        self.xreduce("v_add_f32", 8, 9, steps=(32,))
        a(f"ds_write_b32 v7, v8 offset:{LS-QL}")
        a.flush(); a.label("L_pv")
        a("s_nop 1")
        a("v_bfe_u32 v21, v0, 2, 2\nv_lshrrev_b32 v22, 5, v0")
        a("v_lshl_add_u32 v23, v22, 2, v21\nv_lshlrev_b32 v23, 10, v23")
        a("v_lshl_or_b32 v24, v21, 2, v22")
        a("v_bfe_u32 v25, v0, 4, 1\nv_bfe_u32 v26, v0, 1, 1\nv_lshl_or_b32 v25, v25, 1, v26\ns_lshl_b32 s64, s3, 2\nv_or_b32 v25, s64, v25")
        a("v_xor_b32 v25, v25, v24\nv_lshl_add_u32 v8, v25, 4, v23\nv_and_b32 v26, 1, v0\nv_lshl_add_u32 v8, v26, 3, v8")
        a(f"v_xor_b32 v9, 32, v8\nv_add_u32 v9, 8192, v9\nv_add_u32 v10, 0x10000, v8\nv_add_u32 v11, 0x10000, v9\nv_add_u32 v12, {PL}, v1")
        a("s_waitcnt lgkmcnt(0)\ns_barrier")
        self.stamp(6)
        def rdp(T):
            b = 32 + 8 * (T % 4)
            a(f"ds_read_b64_tr_b16 {vr(b,2)}, v{8+2*(T>>2)} offset:{(T&3)*16384}")
            a(f"ds_read_b64_tr_b16 {vr(b+2,2)}, v{9+2*(T>>2)} offset:{(T&3)*16384}")
            a(f"ds_read_b128 {vr(b+4)}, v12 offset:{T*1024}")
        for T in range(4): rdp(T)
        skip = a.newlabel("L_skipw")
        a(f"s_cmp_ge_u32 s3, 12\ns_cbranch_scc1 {skip}")
        wload(4, 8)
        a.label(skip)
        for T in range(8):
            b = 32 + 8 * (T % 4)
            a(f"s_waitcnt lgkmcnt({3*min(3,7-T)})")
            a(f"v_mfma_f32_32x32x16_bf16 v[16:31], {vr(b)}, {vr(b+4)}, {'0' if T==0 else 'v[16:31]'}")
            if T + 4 < 8: rdp(T + 4)
        a(f"v_and_b32 v4, 31, v0\nv_mul_u32_u24 v4, {OSTR}, v4\nv_lshrrev_b32 v5, 5, v0\nv_lshl_add_u32 v4, v5, 3, v4\ns_lshl_b32 s64, s3, 6\nv_add_u32 v4, s64, v4")
        a(f"s_mul_i32 s64, s3, {2*OSTR}\nv_add_u32 v5, s64, v1")
        a("v_lshrrev_b32 v3, 4, v0\nv_and_b32 v2, 15, v0\nv_lshlrev_b32 v6, 15, v3\nv_lshl_add_u32 v6, v2, 4, v6")
        a(f"s_lshl_b32 s64, s3, 18\ns_lshl_b32 s65, s2, 8\ns_add_u32 s64, s64, s65\ns_add_u32 s64, s64, {LAT}\ns_add_u32 s65, s64, 131072")
        a("s_barrier")
        for q in range(4):
            a(f"v_cvt_pk_bf16_f32 v{32+2*q}, v{16+4*q}, v{17+4*q}\nv_cvt_pk_bf16_f32 v{33+2*q}, v{18+4*q}, v{19+4*q}")
            a(f"ds_write_b64 v4, {vr(32+2*q,2)} offset:{q*16}")
        a("s_waitcnt lgkmcnt(0)\ns_barrier")
        self.stamp(7)
        a(f"ds_read_b128 v[32:35], v5\nds_read_b128 v[36:39], v5 offset:{OSTR}")
        a(f"v_and_b32 v7, 31, v0\nv_lshlrev_b32 v8, 4, v7\nv_add_u32 v8, {LS}, v8\nds_read_b128 v[40:43], v8")
        a(f"s_waitcnt lgkmcnt(2)\nbuffer_store_dwordx4 v[32:35], v6, {WS}, s64 offen sc1\ns_waitcnt lgkmcnt(1)\nbuffer_store_dwordx4 v[36:39], v6, {WS}, s65 offen sc1")
        skip = a.newlabel("L_skipw")
        a(f"s_lshr_b32 s66, s3, 2\ns_mul_i32 s66, s66, {128*WSTR}\ns_add_u32 s66, s66, {WB}")
        a(f"s_cmp_ge_u32 s3, 12\ns_cbranch_scc1 {skip}")
        a(f"v_mul_u32_u24 v9, {8*WSTR}, v3\nv_lshl_add_u32 v9, v2, 4, v9\ns_mul_i32 s64, {U}, {32*WSTR}\ns_add_u32 s64, s64, s66\nv_add_u32 v9, s64, v9")
        a("s_waitcnt vmcnt(2)")
        for e in range(8): a(f"ds_write_b128 v9, {vr(96+4*e)} offset:{e*WSTR}")
        a.label(skip)
        a(f"s_waitcnt lgkmcnt(0)\nv_pk_add_f32 v[40:41], v[40:41], v[42:43]\nv_mov_b32 v44, v15\nv_mov_b32 v45, {TAG}\nv_mov_b32 v47, {TAG}\nv_add_f32 v46, v40, v41")
        a(f"v_lshlrev_b32 v7, 11, v7\ns_lshl_b32 s64, s2, 4\ns_add_u32 s64, s64, {MLB}")
        a("s_waitcnt vmcnt(0)\ns_barrier")
        skip = a.newlabel("L_skipml")
        a(f"s_cmp_lg_u32 s3, 12\ns_cbranch_scc1 {skip}")
        a(f"s_mov_b32 exec_hi, 0\nbuffer_store_dwordx4 v[44:47], v7, {WS}, s64 offen sc1\ns_mov_b64 exec, -1")
        a.label(skip)
        self.stamp(8)
        skip = a.newlabel("L_skipw")
        a(f"s_cmp_ge_u32 s3, 12\ns_cbranch_scc1 {skip}")
        a(f"v_bfe_u32 v9, v0, 2, 2\nv_lshl_add_u32 v9, v3, 3, v9\nv_mul_u32_u24 v9, {WSTR}, v9\nv_and_b32 v10, 3, v0\nv_lshl_add_u32 v9, v10, 3, v9\ns_lshl_b32 s64, {U}, 6\ns_add_u32 s64, s64, s66\nv_add_u32 v9, s64, v9")
        for ct in range(2):
            for ks in range(4):
                for t in range(2):
                    a(f"ds_read_b64_tr_b16 {vr(96+(ct*4+ks)*4+2*t,2)}, v9 offset:{(32*ks+4*t)*WSTR+32*ct}")
        a.label(skip)
        a(f"s_lshr_b32 s65, s3, 3\ns_lshl_b32 s65, s65, 10\ns_lshl_b32 s64, {H}, 11\ns_add_u32 s64, s64, s65\ns_add_u32 s64, s64, {MLB}")
        a(f"s_lshl_b32 s65, {H}, 2\ns_add_u32 s65, s65, {Q}\ns_lshl_b32 s65, s65, 15\ns_lshl_b32 s66, s3, 11\ns_add_u32 s65, s65, s66\ns_add_u32 s65, s65, {LAT}")
        a("s_and_b32 s66, s3, 7\ns_lshl_b32 s66, s66, 5\nv_lshlrev_b32 v4, 2, v3\nv_add_u32 v4, s66, v4")
        a("s_mul_i32 s66, s3, 272\nv_lshlrev_b32 v5, 4, v2\nv_lshl_add_u32 v5, v3, 2, v5\nv_add_u32 v5, s66, v5")
        a("v_mul_u32_u24 v6, 272, v2\nv_lshl_add_u32 v3, v3, 4, v6")
        a(f"v_mov_b32 v29, {TAG}")
        self.poll([f"buffer_load_dwordx4 v[8:11], v1, {WS}, s64 offen sc1"], [9, 11], sleep=4)
        for i in range(2): a(f"buffer_load_dwordx4 {vr(32+4*i)}, v1, {WS}, s65 offen offset:{i*1024} sc1")
        self.stamp(9)
        self.dpp_reduce("v_max_f32", 12, 8, 4); self.xreduce("v_max_f32", 12, 15)
        a("v_sub_f32 v13, v8, v12\nv_exp_f32 v13, v13\nv_mul_f32 v14, v13, v10")
        self.dpp_reduce("v_add_f32", 14, 14, 4); self.xreduce("v_add_f32", 14, 15)
        a("v_rcp_f32 v14, v14\nv_mul_f32 v13, v13, v14")
        a("ds_bpermute_b32 v8, v4, v13\nds_bpermute_b32 v9, v4, v13 offset:16\ns_waitcnt lgkmcnt(0)")
        for i in range(2):
            a(f"s_waitcnt vmcnt({1-i})")
            for d in range(4):
                a(f"v_lshlrev_b32 v24, 16, v{32+4*i+d}\nv_and_b32 v25, 0xffff0000, v{32+4*i+d}")
                if i == 0: a(f"v_mul_f32 v{16+2*d}, v8, v24\nv_mul_f32 v{17+2*d}, v8, v25")
                else: a(f"v_fmac_f32 v{16+2*d}, v9, v24\nv_fmac_f32 v{17+2*d}, v9, v25")
        for e in range(4): a(f"v_permlane32_swap_b32 v{16+e}, v{20+e}")
        for e in range(4): a(f"v_add_f32 v{16+e}, v{16+e}, v{20+e}")
        for e in range(2): a(f"v_permlane16_swap_b32 v{16+e}, v{18+e}")
        for e in range(2): a(f"v_add_f32 v{16+e}, v{16+e}, v{18+e}")
        a(f"v_cvt_pk_bf16_f32 v16, v16, v17\nds_write_b32 v5, v16 offset:{VEC1}")
        a("v_lshrrev_b32 v7, 5, v0\nv_lshlrev_b32 v6, 10, v7\nv_and_b32 v8, 31, v0\nv_lshl_add_u32 v6, v8, 3, v6")
        a("v_lshlrev_b32 v7, 17, v7\nv_bfe_u32 v8, v0, 4, 1\nv_lshl_add_u32 v7, v8, 12, v7\nv_lshl_add_u32 v7, v2, 3, v7")
        a(f"s_lshl_b32 s67, {Q}, 2\ns_add_u32 s67, s67, {U}\ns_lshl_b32 s67, s67, 6\ns_add_u32 s67, s67, {H}\ns_lshl_b32 s67, s67, 7")
        a(f"s_lshl_b32 s60, {H}, 13\ns_add_u32 s60, s60, {CTXP}")
        a("s_waitcnt lgkmcnt(0)\ns_barrier")
        skip = a.newlabel("L_skipp")
        a(f"s_cmp_ge_u32 s3, 4\ns_cbranch_scc1 {skip}")
        self.proj(VEC1, False, True)
        a(f"s_lshl_b32 s64, {Q}, 11\ns_add_u32 s64, s64, s60\ns_lshl_b32 s65, {U}, 8\ns_add_u32 s64, s64, s65")
        a(f"buffer_store_dwordx2 v[28:29], v6, {WS}, s64 offen sc1")
        a.label(skip)
        self.stamp(10)
        skip = a.newlabel("L_skipp")
        a(f"s_cmp_ge_u32 s3, 8\ns_cbranch_scc1 {skip}")
        a(f"s_lshl_b32 s64, {U}, 11\ns_add_u32 s64, s64, s60\ns_lshr_b32 s65, s3, 2\ns_lshl_b32 s66, s65, 10\ns_add_u32 s64, s64, s66")
        a(f"s_lshl_b32 s65, s65, 3\ns_add_u32 s65, s65, {U}\ns_mul_i32 s65, s65, 272\nv_lshlrev_b32 v5, 2, v0\nv_add_u32 v5, s65, v5")
        self.poll([f"buffer_load_dwordx4 v[8:11], v1, {WS}, s64 offen sc1"], [9, 11], sleep=1)
        a(f"v_cvt_pk_bf16_f32 v8, v8, v10\nds_write_b32 v5, v8 offset:{VEC2}\ns_waitcnt lgkmcnt(0)")
        a.label(skip)
        a("s_barrier")
        skip = a.newlabel("L_skipp")
        a(f"s_lshr_b32 s64, s3, 2\ns_cmp_lg_u32 s64, 1\ns_cbranch_scc1 {skip}")
        self.proj(VEC2, False, False)
        a(f"s_add_u32 s64, s67, {OUTP_B}\nbuffer_store_dwordx2 v[28:29], v7, {WS}, s64 offen sc1")
        a.label(skip)
        skip = a.newlabel("L_skipf")
        a(f"s_cmp_lg_u32 s3, 12\ns_cbranch_scc1 {skip}\ns_cmp_lt_u32 s2, 64\ns_cbranch_scc1 {skip}\ns_sub_u32 s60, s2, 64")
        self.final_stage(OUTP_B, 1, "s60")
        a.label(skip)
        self.stamp(11)
        skip = a.newlabel("L_skipa")
        a(f"s_lshr_b32 s64, s3, 2\ns_cmp_lg_u32 s64, 2\ns_cbranch_scc1 {skip}")
        a(f"v_and_b32 v2, 15, v0\nv_lshlrev_b32 v4, 4, v2\ns_lshl_b32 s64, {H}, 8\ns_add_u32 s64, s64, {MLA}")
        self.poll([f"buffer_load_dwordx4 v[8:11], v4, {WS}, s64 offen sc1"], [9, 11], sleep=8)
        self.dpp_reduce("v_max_f32", 12, 8, 3)
        a("v_sub_f32 v13, v8, v12\nv_exp_f32 v13, v13\nv_mul_f32 v14, v13, v10")
        self.dpp_reduce("v_add_f32", 14, 14, 3)
        a("v_rcp_f32 v14, v14\nv_mul_f32 v13, v13, v14")
        a(f"s_lshl_b32 s64, {U}, 6\ns_add_u32 s64, s64, {WSCR}\nv_lshlrev_b32 v4, 2, v2\nv_add_u32 v4, s64, v4\nds_write_b32 v4, v13")
        a("v_lshrrev_b32 v4, 4, v0\nv_lshlrev_b32 v4, 4, v4\nv_add_u32 v4, s64, v4\nds_read_b128 v[24:27], v4")
        a.label(skip)
        a(f"v_lshlrev_b32 v4, 3, v0\ns_lshl_b32 s64, {H}, 13\ns_lshl_b32 s65, s3, 9\ns_add_u32 s64, s64, s65\ns_add_u32 s64, s64, {OPART}")
        a("s_mul_i32 s65, s3, 272\nv_lshlrev_b32 v5, 2, v0\nv_add_u32 v5, s65, v5")
        self.poll([f"buffer_load_dwordx2 v[8:9], v4, {WS}, s64 offen sc1"], [9], sleep=self.o.get("tailsleep", 1))
        a(f"ds_write_b32 v5, v8 offset:{VEC3}\ns_waitcnt lgkmcnt(0)\ns_barrier")
        self.stamp(12)
        skip = a.newlabel("L_skipp")
        a(f"s_lshr_b32 s64, s3, 2\ns_cmp_lg_u32 s64, 2\ns_cbranch_scc1 {skip}")
        self.proj(VEC3, True, True)
        a(f"s_add_u32 s64, s67, {OUTP_A}\nbuffer_store_dwordx2 v[28:29], v7, {WS}, s64 offen sc1")
        a.label(skip)
        end = a.newlabel("L_nend")
        a(f"s_cmp_lg_u32 s3, 12\ns_cbranch_scc1 {end}\ns_cmp_ge_u32 s2, 64\ns_cbranch_scc1 {end}")
        self.final_stage(OUTP_A, 0, "s2")
        a(f"s_cmp_lg_u32 s2, 0\ns_cbranch_scc1 {end}")
        a(f"s_mov_b64 exec, 1\nv_mov_b32 v3, {TAG}\nv_mov_b32 v4, 0\nbuffer_store_dword v3, v4, {WS}, 0 offen offset:{EPOCH} sc1\ns_mov_b64 exec, -1")
        a.label(end)
        self.finish()

    def role_aatt(self):
        a = self.a; a.flush(); a.label("L_aatt")
        MX, LS, QV, RED = 0, 256, 1024, 2048
        a("s_sub_u32 s61, s2, 128")
        a("v_bfe_u32 v3, v0, 2, 2\nv_lshlrev_b32 v2, 8, v3\nv_lshrrev_b32 v4, 4, v0\nv_lshl_add_u32 v2, v4, 6, v2\nv_and_b32 v5, 3, v0\nv_lshl_add_u32 v2, v5, 4, v2\nv_lshlrev_b32 v1, 4, v0")
        a("s_lshl_b32 s60, s61, 18\ns_lshl_b32 s64, s3, 14\ns_add_u32 s60, s60, s64\ns_add_u32 s65, s60, 4096\ns_add_u32 s68, s60, 8192\ns_add_u32 s67, s60, 12288")
        so = ["s60", "s65", "s68", "s67"]
        a("s_waitcnt lgkmcnt(0)")
        self.epoch()
        self.srd(R1, P_K, 32 << 20); self.srd(R2, P_V, 32 << 20); self.srd(WS, P_WS, WS_BYTES)
        d = self.o.get("kdepth", 0)
        for i in range(16):
            a(f"buffer_load_dwordx4 {vr(64+4*i)}, v2, {R1}, {so[i>>2]} offen offset:{(i&3)*1024} nt")
            if d and i + 1 >= d: a(f"s_waitcnt vmcnt({d-1})")
        a(f"s_bfe_u32 s64, s61, 0x30003\ns_lshl_b32 s64, s64, 2\ns_add_u32 s64, s64, s3\ns_lshl_b32 s64, s64, 13\ns_lshr_b32 s66, s61, 6\ns_lshl_b32 s66, s66, 10\ns_add_u32 s64, s64, s66\ns_add_u32 s64, s64, {QAP}\ns_add_u32 s66, s64, 4096")
        self.tag_ready()
        for v in range(4):
            a(f"s_mov_b32 s{44+2*v}, {hex(0x11111111<<v)}\ns_mov_b32 s{45+2*v}, {hex(0x11111111<<v)}")
        a("s_barrier")
        def v0loads():
            for e in range(8): a(f"buffer_load_dwordx4 {vr(32+4*e)}, v1, {R2}, {so[e>>2]} offen offset:{(e&3)*1024} nt")
        nq, join = a.newlabel("L_nq"), a.newlabel("L_join")
        a(f"s_cmp_ge_u32 s3, 4\ns_cbranch_scc1 {nq}")
        self.gather4(16, only_issue=True)
        v0loads()
        a(f"s_lshl_b32 s69, s3, 8\ns_add_u32 s69, s69, {QV}\nv_lshlrev_b32 v6, 2, v0\nv_add_u32 v6, s69, v6")
        self.gather4(16, first_wait=8, issued=True, sleep=8)
        a(f"ds_write_b32 v6, v16\ns_waitcnt lgkmcnt(0)\ns_branch {join}")
        a.label(nq)
        v0loads()
        a.label(join)
        self.stamp(1)
        a(f"s_barrier\nds_read_b128 v[8:11], v2 offset:{QV}\ns_waitcnt vmcnt(8) lgkmcnt(0)")
        self.stamp(2)
        for i in range(16): a(f"v_mfma_f32_16x16x32_bf16 {vr(64+4*i)}, {vr(64+4*i)}, v[8:11], 0")
        for g in range(4):
            self.diag_sum([(64 + 4 * i, 16 + i) for i in range(4*g, 4*g+4)])
            for i in range(4*g, 4*g+4):
                if i < 8: a(f"buffer_load_dwordx4 {vr(64+4*i)}, v1, {R2}, {so[2+(i>>2)]} offen offset:{(i&3)*1024} nt")
        a("v_max3_f32 v8, v16, v17, v18")
        for i in range(19, 31, 2): a(f"v_max3_f32 v8, v8, v{i}, v{i+1}")
        a("v_max_f32 v8, v8, v31")
        self.xreduce("v_max_f32", 8, 9)
        a(f"v_lshlrev_b32 v6, 6, v3\ns_lshl_b32 s64, s3, 2\nv_add_u32 v7, s64, v6\nds_write_b32 v7, v8 offset:{MX}\ns_waitcnt lgkmcnt(0)\ns_barrier")
        for q in range(4): a(f"ds_read_b128 {vr(96+4*q)}, v6 offset:{MX+16*q}")
        a("s_waitcnt lgkmcnt(0)\nv_max3_f32 v8, v96, v97, v98")
        for i in range(99, 111, 2): a(f"v_max3_f32 v8, v8, v{i}, v{i+1}")
        a(f"v_max_f32 v8, v8, v111\nv_mul_f32 v4, {SC}, v8")
        for i in range(16): a(f"v_fma_f32 v{16+i}, v{16+i}, {SC}, -v4")
        for i in range(16): a(f"v_exp_f32 v{16+i}, v{16+i}")
        for i in range(8): a(f"v_cvt_pk_bf16_f32 v{8+i}, v{16+2*i}, v{17+2*i}")
        for st in (8, 4, 2):
            for i in range(0, st, 2): a(f"v_pk_add_f32 {vr(16+i,2)}, {vr(16+i,2)}, {vr(16+i+st,2)}")
        a("v_add_f32 v16, v16, v17")
        self.xreduce("v_add_f32", 16, 17)
        a(f"ds_write_b32 v7, v16 offset:{LS}")
        for blk in range(2):
            for v in range(4):
                for t in range(4): a(f"v_cndmask_b32 v{96+16*blk+4*v+t}, 0, v{8+4*blk+t}, s[{44+2*v}:{45+2*v}]")
        a("s_waitcnt lgkmcnt(0)\ns_barrier")
        self.stamp(3)
        skip = a.newlabel("L_skipml")
        a(f"s_cmp_lg_u32 s3, 0\ns_cbranch_scc1 {skip}")
        for q in range(4): a(f"ds_read_b128 {vr(16+4*q)}, v6 offset:{LS+16*q}")
        a(f"s_bfe_u32 s64, s61, 0x30003\ns_lshl_b32 s64, s64, 10\ns_lshr_b32 s68, s61, 6\ns_lshl_b32 s68, s68, 3\ns_and_b32 s69, s61, 7\ns_add_u32 s68, s68, s69\ns_lshl_b32 s68, s68, 4\ns_add_u32 s64, s64, s68\ns_add_u32 s64, s64, {MLA}")
        a("v_lshlrev_b32 v5, 8, v3\ns_waitcnt lgkmcnt(0)")
        for st in (8, 4, 2):
            for i in range(0, st, 2): a(f"v_pk_add_f32 {vr(16+i,2)}, {vr(16+i,2)}, {vr(16+i+st,2)}")
        a(f"v_add_f32 v22, v16, v17\nv_mov_b32 v20, v4\nv_mov_b32 v21, {TAG}\nv_mov_b32 v23, {TAG}")
        a(f"s_mov_b64 exec, 0x1111\nbuffer_store_dwordx4 v[20:23], v5, {WS}, s64 offen sc1\ns_mov_b64 exec, -1\ns_nop 1")
        a.label(skip)
        a(f"v_lshlrev_b32 v5, 5, v0\ns_lshl_b32 s64, s3, 11\ns_add_u32 s64, s64, {RED}\nv_add_u32 v5, s64, v5")
        a(f"v_lshlrev_b32 v6, 3, v0\ns_lshl_b32 s64, s3, 9\ns_add_u32 s64, s64, {RED}\nv_add_u32 v7, s64, v6")
        a(f"s_bfe_u32 s64, s61, 0x30003\ns_lshl_b32 s64, s64, 2\ns_add_u32 s64, s64, s3\ns_lshl_b32 s64, s64, 13\ns_lshr_b32 s68, s61, 6\ns_lshl_b32 s68, s68, 3\ns_and_b32 s69, s61, 7\ns_add_u32 s68, s68, s69\ns_lshl_b32 s68, s68, 9\ns_add_u32 s64, s64, s68\ns_add_u32 s64, s64, {OPART}")
        for blk in range(2):
            a(f"s_waitcnt vmcnt({8 if blk==0 else 0})")
            if blk == 1: self.stamp(4)
            W = 32 + 32 * blk
            for ep in range(8):
                t = 16 + 4 * (ep % 4)
                self.perm_frag(W, ep, t)
                D = 8 + 4 * (ep >> 2)
                first = (blk == 0 and (ep & 3) == 0)
                a(f"v_mfma_f32_16x16x32_bf16 {vr(D)}, {vr(96+16*blk+4*(ep&3))}, {vr(t)}, {'0' if first else vr(D)}")
        a("ds_write_b128 v5, v[8:11]\nds_write_b128 v5, v[12:15] offset:16\ns_waitcnt lgkmcnt(0)\ns_barrier")
        end = a.newlabel("L_aend")
        a(f"s_cmp_ge_u32 s3, 4\ns_cbranch_scc1 {end}")
        for w in range(16): a(f"ds_read_b64 {vr(32+2*w,2)}, v7 offset:{w*2048}")
        a(f"v_mov_b32 v9, {TAG}\ns_waitcnt lgkmcnt(0)")
        for st in (16, 8, 4, 2):
            for i in range(0, st, 2): a(f"v_pk_add_f32 {vr(32+i,2)}, {vr(32+i,2)}, {vr(32+i+st,2)}")
        a(f"v_cvt_pk_bf16_f32 v8, v32, v33\nbuffer_store_dwordx2 v[8:9], v6, {WS}, s64 offen sc1")
        a.label(end)
        self.finish()

    def build(self):
        a = self.a
        hdr = open("cdna_kernels/" + NAME + ".s.ref").read().split("; @launch")[0]
        a.raw(hdr.rstrip("\n"))
        a.raw("; @launch grid=(256,1,1) block=(1024,1,1) lds=163840")
        a.raw('.amdgcn_target "amdgcn-amd-amdhsa--gfx950"\n.text\n.globl %s_kernel\n.p2align 8\n.type %s_kernel,@function\n%s_kernel:' % (NAME, NAME, NAME))
        if self.stamps or self.o.get("dbgspan"): a("s_memrealtime s[72:73]")
        a("s_cmp_ge_u32 s2, 256\ns_cbranch_scc1 L_exit")
        a("s_load_dwordx16 s[4:19], s[0:1], 0\ns_load_dwordx8 s[20:27], s[0:1], 64\ns_load_dwordx4 s[28:31], s[0:1], 96")
        a("v_lshrrev_b32 v1, 6, v0\nv_and_b32 v0, 63, v0\nv_readfirstlane_b32 s3, v1")
        a(f"s_mov_b32 {SELLO}, 0x05040100\ns_mov_b32 {SELHI}, 0x07060302\ns_mov_b32 {SC}, {hex(SCALE_BITS)}")
        self.stamp_init()
        a("s_cmp_lt_u32 s2, 128\ns_cbranch_scc1 L_n\ns_branch L_aatt")
        a.label("L_exit"); a("s_endpgm")
        self.role_aatt(); self.role_n()
        a.raw('.section .rodata,"a"\n.p2align 6\n.amdhsa_kernel %s_kernel' % NAME)
        a.raw("  .amdhsa_next_free_vgpr 128\n  .amdhsa_next_free_sgpr 100\n  .amdhsa_accum_offset 128\n  .amdhsa_group_segment_fixed_size 0\n  .amdhsa_kernarg_size 112\n  .amdhsa_user_sgpr_count 2\n  .amdhsa_user_sgpr_kernarg_segment_ptr 1\n  .amdhsa_system_sgpr_workgroup_id_x 1\n.end_amdhsa_kernel")
        return a.text()

if __name__ == "__main__":
    out = sys.argv[1]; o = {}
    for x in sys.argv[2:]:
        if x == "--stamps": o["stamps"] = True
        else:
            k, v = x.split("="); o[k] = int(v)
    open(out, "w").write(Gen(**o).build())
```

```python
import sys, math, struct
sys.path.insert(0, "gen")
from asmlib import Asm

NAME = "concat_heads__gqa_block_cached__compressed_kv_cla__decode"
EPOCH = 0x0
QABS, MLA, MLB = 0x20000, 0x40000, 0x50000
QAP, QBP, CTXP, OPART, OUTP_A, OUTP_B, LAT = 0x80000, 0xC0000, 0x100000, 0x140000, 0x180000, 0x1C0000, 0x400000
STAMP = 0x1000000
WS_BYTES = 0x10000000
SPIN = 20000
DPP = "row_mask:0xf bank_mask:0xf"
SCALE = math.log2(math.e) / math.sqrt(128.0)
SCALE_BITS = struct.unpack("<I", struct.pack("<f", SCALE))[0]

P_AX, P_K, P_V, P_WQ, P_WO, P_BX, P_C, P_BWQ, P_UK, P_UV, P_BWO, P_OUT, P_DBG, P_WS = 4, 6, 8, 10, 12, 14, 16, 18, 20, 22, 24, 26, 28, 30
WS, R1, R2, R3, R4, R5 = "s[32:35]", "s[36:39]", "s[40:43]", "s[44:47]", "s[48:51]", "s[52:55]"
TAG, CNT, SELLO, SELHI, SC = "s56", "s57", "s58", "s59", "s71"
H, Q, U = "s61", "s68", "s69"

def vr(a, n=4): return f"v[{a}:{a+n-1}]"
def fsw(i): return ((i & 3) << 2) | ((i >> 2) & 3)

class Gen:
    def __init__(self, stamps=False, **o):
        self.a = Asm(); self.stamps = stamps; self.o = o
    def srd(self, name, ptr, nbytes):
        b = int(name[2:].split(":")[0])
        self.a(f"s_mov_b32 s{b}, s{ptr}\ns_mov_b32 s{b+1}, s{ptr+1}\ns_mov_b32 s{b+2}, {hex(nbytes)}\ns_mov_b32 s{b+3}, 0x20000")
    def stamp(self, i):
        if self.stamps:
            self.a(f"s_memrealtime s[{72+2*i}:{73+2*i}]\ns_waitcnt lgkmcnt(0)")
    def stamp_init(self):
        if self.stamps:
            for i in range(2, 28): self.a(f"s_mov_b32 s{72+i}, 0")
    def finish(self):
        a = self.a
        if self.stamps:
            self.stamp(13)
            a("s_mov_b64 exec, 1")
            a(f"s_lshl_b32 s60, s2, 4\ns_add_u32 s60, s60, s3\ns_lshl_b32 s60, s60, 7\ns_add_u32 s60, s60, {STAMP}")
            a("v_mov_b32 v1, 0")
            for q in range(7):
                for i in range(4): a(f"v_mov_b32 v{4+i}, s{72+4*q+i}")
                a(f"buffer_store_dwordx4 v[4:7], v1, {WS}, s60 offen offset:{16*q}")
                a("s_nop 1")
            a("s_waitcnt vmcnt(0)")
        if self.o.get("amp"):
            L = a.newlabel("L_amp")
            a("s_cmp_lg_u32 s3, 12\ns_cbranch_scc1 L_exit\ns_cmp_ge_u32 s2, 8\ns_cbranch_scc1 L_exit")
            a(f"s_memrealtime s[74:75]\ns_waitcnt lgkmcnt(0)\ns_sub_u32 s76, s74, s72\ns_mul_i32 s76, s76, {self.o['amp']}")
            a.label(L)
            a(f"s_memrealtime s[78:79]\ns_waitcnt lgkmcnt(0)\ns_sub_u32 s77, s78, s74\ns_cmp_lt_u32 s77, s76\ns_cbranch_scc1 {L}")
        if self.o.get("dbgspan"):
            a("s_cmp_lg_u32 s3, 12\ns_cbranch_scc1 L_exit\ns_cmp_ge_u32 s2, 64\ns_cbranch_scc1 L_exit")
            a("s_memrealtime s[74:75]")
            self.srd(R5, P_DBG, 256)
            a("s_waitcnt lgkmcnt(0)\ns_mov_b64 exec, 1\ns_not_b32 s72, s72\nv_mov_b32 v1, 0\nv_mov_b32 v4, s74\nv_mov_b32 v5, s72")
            a(f"buffer_atomic_umax v4, v1, {R5}, 0 offen sc1\nbuffer_atomic_umax v5, v1, {R5}, 0 offen offset:4 sc1\ns_waitcnt vmcnt(0)")
        a("s_endpgm")
    def epoch(self):
        self.a(f"s_load_dword {TAG}, s[{P_WS}:{P_WS+1}], {EPOCH}")
    def tag_ready(self):
        self.a(f"s_waitcnt lgkmcnt(0)\ns_mul_i32 {TAG}, {TAG}, 1664525\ns_add_u32 {TAG}, {TAG}, 1013904223")
    def poll(self, loads, tagregs, first_wait=None, issued=False, sleep=2):
        a = self.a
        L, OK, CHK = a.newlabel("L_poll"), a.newlabel("L_ok"), a.newlabel("L_chk")
        a(f"s_mov_b32 {CNT}, {SPIN}")
        if issued:
            a(f"s_waitcnt vmcnt({first_wait})\ns_branch {CHK}")
        a.label(L)
        for l in loads: a(l)
        a("s_waitcnt vmcnt(0)")
        a.label(CHK)
        for i, t in enumerate(tagregs):
            if i == 0: a(f"v_cmp_ne_u32 vcc, {TAG}, v{t}")
            else: a(f"v_cmp_ne_u32 s[62:63], {TAG}, v{t}\ns_or_b64 vcc, vcc, s[62:63]")
        a(f"s_cmp_eq_u64 vcc, 0\ns_cbranch_scc1 {OK}")
        if sleep: a(f"s_sleep {sleep}")
        a(f"s_sub_u32 {CNT}, {CNT}, 1\ns_cmp_lg_u32 {CNT}, 0\ns_cbranch_scc1 {L}")
        a.label(OK)
    def lds_signal(self, addr):
        self.a(f"s_waitcnt lgkmcnt(0)\ns_mov_b64 exec, 1\nv_mov_b32 v6, {addr}\nv_mov_b32 v7, 1\nds_add_u32 v6, v7\ns_mov_b64 exec, -1")
    def lds_wait(self, addr, n):
        a = self.a
        L, OK = a.newlabel("L_lw"), a.newlabel("L_lok")
        a(f"s_mov_b32 {CNT}, {SPIN*50}\nv_mov_b32 v6, {addr}")
        a.label(L)
        a(f"ds_read_b32 v7, v6\ns_waitcnt lgkmcnt(0)\nv_readfirstlane_b32 s62, v7\ns_cmp_ge_u32 s62, {n}\ns_cbranch_scc1 {OK}")
        a(f"s_sleep 1\ns_sub_u32 {CNT}, {CNT}, 1\ns_cmp_lg_u32 {CNT}, 0\ns_cbranch_scc1 {L}")
        a.label(OK)
    def perm_frag(self, W, ep, dst):
        for t in range(4):
            self.a(f"v_perm_b32 v{dst+t}, v{W+4*(2*t+1)+(ep>>1)}, v{W+4*(2*t)+(ep>>1)}, {SELHI if ep&1 else SELLO}")
    def diag_sum(self, lst):
        a = self.a
        for D, dst in lst: a(f"v_mov_b32_dpp v{dst}, v{D} quad_perm:[0,0,0,0] {DPP}")
        for i in (1, 2, 3):
            for D, dst in lst: a(f"v_add_f32_dpp v{dst}, v{D+i}, v{dst} quad_perm:[{i},{i},{i},{i}] {DPP}")
    def xreduce(self, op, x, t, steps=(32, 16)):
        for s in steps:
            self.a(f"v_mov_b32 v{t}, v{x}\nv_permlane{s}_swap_b32 v{x}, v{t}\n{op} v{x}, v{x}, v{t}")
    def dpp_reduce(self, op, x, src, n):
        pats = ["quad_perm:[1,0,3,2]", "quad_perm:[2,3,0,1]", "row_half_mirror", "row_mirror"][:n]
        for i, p in enumerate(pats):
            s = src if i == 0 else x
            self.a(f"{op}_dpp v{x}, v{s}, v{s} {p} {DPP}")

    QL = 131072
    def proj(self, vec, weights, add):
        a = self.a
        for ks in range(4): a(f"ds_read_b128 {vr(32+4*ks)}, v3 offset:{vec+ks*64}")
        for ks in range(4):
            a(f"s_waitcnt lgkmcnt({3-ks})")
            for ct in range(2):
                a(f"v_mfma_f32_16x16x32_bf16 {vr(16+4*ct)}, {vr(32+4*ks)}, {vr(96+(ct*4+ks)*4)}, {'0' if ks==0 else vr(16+4*ct)}")
        if weights:
            for ct in range(2): a(f"v_mul_f32 v{12+ct}, v24, v{16+4*ct}")
            for r in range(1, 4):
                for ct in range(2): a(f"v_fmac_f32 v{12+ct}, v{24+r}, v{16+4*ct+r}")
        else:
            for ct in range(2): a(f"v_pk_add_f32 {vr(16+4*ct,2)}, {vr(16+4*ct,2)}, {vr(18+4*ct,2)}")
            for ct in range(2): a(f"v_add_f32 v{12+ct}, v{16+4*ct}, v{17+4*ct}")
        a("v_permlane16_swap_b32 v12, v13")
        a("v_add_f32 v28, v12, v13" if add else "v_mov_b32 v28, v12")
    def front_q(self, xptr, wptr, red, flag, dst):
        a = self.a
        a("v_lshrrev_b32 v3, 4, v0\nv_lshlrev_b32 v4, 16, v3\nv_and_b32 v2, 15, v0\nv_lshl_add_u32 v4, v2, 4, v4")
        a("v_and_b32 v5, 1, v0\nv_lshlrev_b32 v5, 10, v5\nv_lshl_add_u32 v5, v3, 4, v5")
        a(f"s_lshl_b32 s60, {Q}, 2\ns_add_u32 s60, s60, {U}\ns_lshl_b32 s65, s60, 6\ns_lshl_b32 s60, s60, 18\ns_lshl_b32 s64, {H}, 8\ns_add_u32 s60, s60, s64")
        a("s_waitcnt lgkmcnt(0)")
        self.epoch()
        self.srd(R1, wptr, 4 << 20); self.srd(R2, xptr, 2048); self.srd(WS, P_WS, WS_BYTES)
        a(f"buffer_load_dwordx4 v[8:11], v5, {R2}, s65 offen")
        for e in range(8): a(f"s_add_u32 s64, s60, {e*8192}\nbuffer_load_dwordx4 {vr(32+4*e)}, v4, {R1}, s64 offen nt")
        self.tag_ready()
        a("s_barrier")
        a(f"v_lshlrev_b32 v5, 3, v2\ns_lshl_b32 s64, {U}, 10\ns_add_u32 s64, s64, {red}\nv_add_u32 v5, s64, v5")
        a("s_waitcnt vmcnt(0)")
        self.stamp(1)
        for ep in range(8):
            t = 12 + 4 * (ep % 4)
            self.perm_frag(32, ep, t)
            a(f"v_mfma_f32_16x16x32_bf16 {vr(64+4*ep)}, v[8:11], {vr(t)}, 0")
        a("s_mov_b64 exec, 0xffff")
        for e in range(8): a(f"ds_write_b64 v5, {vr(64+4*e,2)} offset:{e*128}")
        a("s_mov_b64 exec, -1")
        self.lds_signal(flag)
        skip = a.newlabel("L_skipred")
        a(f"s_cmp_ge_u32 {U}, 2\ns_cbranch_scc1 {skip}")
        a(f"v_lshlrev_b32 v4, 8, v3\nv_lshl_add_u32 v4, v2, 3, v4\ns_lshl_b32 s64, {U}, 2\ns_add_u32 s64, s64, {red}\nv_add_u32 v4, s64, v4\nv_add_u32 v5, 128, v4")
        a(f"v_lshlrev_b32 v12, 6, v2\nv_lshl_add_u32 v12, v3, 4, v12\ns_lshl_b32 s64, {H}, 13\ns_lshl_b32 s65, {U}, 10\ns_add_u32 s64, s64, s65\ns_add_u32 s64, s64, {dst}\ns_lshl_b32 s65, {Q}, 11\ns_add_u32 s65, s65, s64")
        a(f"v_mov_b32 v9, {TAG}\nv_mov_b32 v11, {TAG}")
        self.lds_wait(flag, 4)
        a("ds_read2st64_b32 v[16:17], v4 offset0:0 offset1:4\nds_read2st64_b32 v[18:19], v4 offset0:8 offset1:12")
        a("ds_read2st64_b32 v[20:21], v5 offset0:0 offset1:4\nds_read2st64_b32 v[22:23], v5 offset0:8 offset1:12")
        a("s_waitcnt lgkmcnt(0)\nv_pk_add_f32 v[16:17], v[16:17], v[18:19]\nv_pk_add_f32 v[20:21], v[20:21], v[22:23]\nv_add_f32 v8, v16, v17\nv_add_f32 v10, v20, v21")
        a(f"buffer_store_dwordx4 v[8:11], v12, {WS}, s65 offen sc1")
        self.stamp(2)
        return skip
    def gather4(self, base, first_wait=None, issued=False, sleep=2, only_issue=False):
        a = self.a
        loads = [f"buffer_load_dwordx4 {vr(base+4*i)}, v1, {WS}, {'s64' if i<2 else 's66'} offen offset:{(i&1)*2048} sc1" for i in range(4)]
        if only_issue:
            for l in loads: a(l)
            return
        self.poll(loads, [base + 4 * i + k for i in range(4) for k in (1, 3)], first_wait=first_wait, issued=issued, sleep=sleep)
        a(f"v_add_f32 v{base}, v{base}, v{base+4}\nv_add_f32 v{base+2}, v{base+2}, v{base+6}\nv_add_f32 v{base+8}, v{base+8}, v{base+12}\nv_add_f32 v{base+10}, v{base+10}, v{base+14}")
        a(f"v_add_f32 v{base}, v{base}, v{base+8}\nv_add_f32 v{base+2}, v{base+2}, v{base+10}\nv_cvt_pk_bf16_f32 v{base}, v{base}, v{base+2}")
    def final_stage(self, outp, part, sl):
        a = self.a
        self.srd(R1, P_OUT, 4096)
        a(f"s_lshl_b32 s64, {sl}, 12\ns_add_u32 s64, s64, {outp}")
        loads = [f"buffer_load_dwordx4 {vr(32+4*i)}, v1, {WS}, s64 offen offset:{i*1024} sc1" for i in range(4)]
        a(f"s_lshr_b32 s66, {sl}, 5\ns_lshl_b32 s66, s66, 11\ns_and_b32 s65, {sl}, 31\ns_lshl_b32 s65, s65, 5\ns_add_u32 s66, s66, s65\ns_add_u32 s66, s66, {part*1024}")
        a("v_lshlrev_b32 v2, 2, v0")
        self.poll(loads, [32 + 4 * i + k for i in range(4) for k in (1, 3)], sleep=self.o.get("tailsleep", 1))
        for st in (8, 4):
            for i in range(0, st, 2): a(f"v_add_f32 v{32+i}, v{32+i}, v{32+i+st}")
        a(f"v_add_f32_dpp v32, v32, v32 row_ror:8 {DPP}\nv_add_f32_dpp v34, v34, v34 row_ror:8 {DPP}")
        for s in (32, 16):
            a(f"v_mov_b32 v33, v32\nv_mov_b32 v35, v34\nv_permlane{s}_swap_b32 v32, v33\nv_permlane{s}_swap_b32 v34, v35\nv_add_f32 v32, v32, v33\nv_add_f32 v34, v34, v35")
        a("v_cvt_pk_bf16_f32 v32, v32, v34\ns_mov_b64 exec, 0xff")
        a(f"buffer_store_dword v32, v2, {R1}, s66 offen\ns_mov_b64 exec, -1")

    def role_n(self):
        a = self.a; a.flush(); a.label("L_n")
        QL = self.QL
        REDB, REDA, QV, F1, F2, F3 = QL, QL + 4096, QL + 8192, QL + 8704, QL + 8708, QL + 8712
        PL, MX, LS, WSCR = QL, QL + 24576, QL + 25600, QL + 30720
        WB, WSTR, OSTR = 40960, 288, 1040
        VEC1, VEC2, VEC3 = 0, 8192, 16384
        a(f"s_and_b32 {H}, s2, 31\ns_lshr_b32 {Q}, s2, 5\ns_and_b32 {U}, s3, 3\nv_lshlrev_b32 v1, 4, v0")
        a("s_lshr_b32 s64, s3, 2\ns_cmp_eq_u32 s64, 1\ns_cbranch_scc1 L_g1\ns_cmp_eq_u32 s64, 2\ns_cbranch_scc1 L_g2\ns_cmp_eq_u32 s64, 3\ns_cbranch_scc1 L_g3")
        a(f"v_mov_b32 v6, {F1}\nv_mov_b32 v8, 0\nv_mov_b32 v9, 0\nv_mov_b32 v10, 0\nv_mov_b32 v11, 0\nds_write_b128 v6, v[8:11]")
        skip = self.front_q(P_BX, P_BWQ, REDB, F1, QBP)
        a("s_add_u32 s66, s64, 4096")
        a(f"s_lshl_b32 s65, {U}, 8\ns_add_u32 s65, s65, {QV}\nv_lshlrev_b32 v4, 2, v0\nv_add_u32 v4, s65, v4")
        self.gather4(16, sleep=1)
        a("ds_write_b32 v4, v16")
        self.lds_signal(F2)
        self.stamp(3)
        a.label(skip)
        self.srd(R3, P_UV, 4 << 20)
        a(f"s_lshl_b32 s67, {Q}, 2\ns_add_u32 s67, s67, {U}\ns_lshl_b32 s67, s67, 18\ns_lshl_b32 s64, {H}, 8\ns_add_u32 s67, s67, s64\ns_mov_b32 s70, 8192")
        a("s_branch L_qpoll")
        a.flush(); a.label("L_g1")
        a("v_bfe_u32 v4, v0, 2, 2\nv_lshlrev_b32 v4, 16, v4\nv_lshrrev_b32 v3, 4, v0\nv_lshl_add_u32 v4, v3, 6, v4\nv_and_b32 v2, 3, v0\nv_lshl_add_u32 v4, v2, 4, v4")
        a(f"s_lshl_b32 s60, {Q}, 2\ns_add_u32 s60, s60, {U}\ns_lshl_b32 s65, s60, 12\ns_lshl_b32 s60, s60, 18\ns_lshl_b32 s64, {H}, 8\ns_add_u32 s60, s60, s64")
        a("s_waitcnt lgkmcnt(0)")
        self.epoch()
        self.srd(R1, P_UK, 4 << 20); self.srd(WS, P_WS, WS_BYTES)
        for i in range(8): a(f"s_add_u32 s64, s60, {i*8192}\nbuffer_load_dwordx4 {vr(64+4*i)}, v4, {R1}, s64 offen nt")
        self.tag_ready()
        a("s_barrier")
        a(f"v_bfe_u32 v5, v0, 2, 1\nv_lshlrev_b32 v4, 8, v5\nv_lshl_add_u32 v4, v3, 6, v4\nv_lshl_add_u32 v4, v2, 4, v4\nv_add_u32 v4, {QV}, v4")
        a("v_lshlrev_b32 v5, 16, v5\nv_lshl_add_u32 v5, v3, 10, v5\nv_and_b32 v2, 1, v0\nv_lshl_add_u32 v5, v2, 4, v5\nv_cmp_eq_u32 s[66:67], 1, v2")
        a(f"s_lshl_b32 s64, {H}, 5\ns_add_u32 s65, s65, s64\ns_add_u32 s65, s65, {QABS}")
        a(f"v_mov_b32 v25, {TAG}\nv_mov_b32 v27, {TAG}\ns_waitcnt vmcnt(0)")
        self.stamp(1)
        self.lds_wait(F2, 2)
        a("ds_read_b128 v[8:11], v4\ns_waitcnt lgkmcnt(0)")
        for i in range(8): a(f"v_mfma_f32_16x16x32_bf16 {vr(64+4*i)}, {vr(64+4*i)}, v[8:11], 0")
        for g in range(2): self.diag_sum([(64 + 4 * i, 12 + i) for i in range(4*g, 4*g+4)])
        for i in range(4): a(f"v_cvt_pk_bf16_f32 v{20+i}, v{12+2*i}, v{13+2*i}")
        a("v_cndmask_b32 v24, v20, v22, s[66:67]\nv_cndmask_b32 v26, v21, v23, s[66:67]")
        a(f"s_mov_b32 exec_lo, 0x00330033\ns_mov_b32 exec_hi, 0x00330033\nbuffer_store_dwordx4 v[24:27], v5, {WS}, s65 offen sc1\ns_mov_b64 exec, -1")
        self.stamp(3)
        self.srd(R3, P_BWO, 4 << 20)
        a(f"s_lshl_b32 s67, {H}, 17\ns_lshl_b32 s64, {U}, 15\ns_add_u32 s67, s67, s64\ns_lshl_b32 s64, {Q}, 8\ns_add_u32 s67, s67, s64\ns_mov_b32 s70, 1024")
        a.flush(); a.label("L_qpoll")
        a(f"s_lshr_b32 s64, s2, 6\ns_lshl_b32 s64, s64, 16\ns_lshl_b32 s65, s3, 13\ns_add_u32 s64, s64, s65\ns_add_u32 s64, s64, {QABS}\ns_add_u32 s65, s64, 4096")
        loads = [f"buffer_load_dwordx4 {vr(32+4*q)}, v1, {WS}, s{64+(q>>2)} offen offset:{(q&3)*1024} sc1" for q in range(8)]
        self.poll(loads[7:], [61, 63], sleep=4)
        self.poll(loads, [32 + 4 * q + k for q in range(8) for k in (1, 3)], sleep=4)
        a(f"s_lshl_b32 s65, s3, 12\ns_add_u32 s65, s65, {QL}\nv_lshlrev_b32 v8, 3, v0\nv_add_u32 v8, s65, v8\nv_add_u32 v9, 1024, v8\nv_add_u32 v10, 2048, v8\nv_add_u32 v11, 3072, v8")
        self.stamp(4)
        a("s_barrier")
        for q in range(8): a(f"ds_write2_b32 v{8+(q>>1)}, v{32+4*q}, v{34+4*q} offset0:{(q&1)*128} offset1:{(q&1)*128+1}")
        a("s_waitcnt lgkmcnt(0)\ns_branch L_b1")
        a.flush(); a.label("L_g2")
        skip = self.front_q(P_AX, P_WQ, REDA, F3, QAP)
        a.label(skip)
        self.srd(R3, P_WO, 4 << 20)
        a(f"s_lshl_b32 s67, {H}, 17\ns_lshl_b32 s64, {U}, 15\ns_add_u32 s67, s67, s64\ns_lshl_b32 s64, {Q}, 8\ns_add_u32 s67, s67, s64\ns_mov_b32 s70, 1024")
        a("s_waitcnt lgkmcnt(0)\ns_barrier")
        a.flush(); a.label("L_b1")
        a("s_barrier")
        a("v_lshrrev_b32 v3, 4, v0\nv_and_b32 v2, 15, v0\ns_lshl_b32 s64, s70, 3\nv_mul_lo_u32 v5, v3, s64\nv_lshl_add_u32 v5, v2, 4, v5")
        def wload(e0, e1):
            for e in range(e0, e1):
                a(f"s_mul_i32 s64, s70, {e}\ns_add_u32 s64, s64, s67\nbuffer_load_dwordx4 {vr(96+4*e)}, v5, {R3}, s64 offen nt")
        wload(0, 4)
        a("s_barrier\ns_barrier")
        a("s_branch L_pv")
        a.flush(); a.label("L_g3")
        a(f"s_lshl_b32 s60, s2, 17\ns_lshl_b32 s66, {U}, 15\ns_add_u32 s60, s60, s66")
        a("s_waitcnt lgkmcnt(0)")
        self.epoch()
        self.srd(R1, P_C, 16 << 20); self.srd(WS, P_WS, WS_BYTES); self.srd(R3, P_WO, 4 << 20)
        a("s_barrier")
        cd = self.o.get("cdepth", 0)
        for i in range(32):
            a(f"v_xor_b32 v{4+(i&1)}, {fsw(i&15)*16}, v1\ns_add_u32 m0, s66, {i*1024}\ns_add_u32 s64, s60, {i*1024}\nbuffer_load_dwordx4 v{4+(i&1)}, {R1}, s64 offen nt lds")
            if cd and i + 1 >= cd: a(f"s_waitcnt vmcnt({cd-1})")
        self.tag_ready()
        a("v_and_b32 v2, 31, v0\nv_lshrrev_b32 v3, 5, v0\nv_and_b32 v4, 3, v0\nv_lshlrev_b32 v4, 2, v4\nv_bfe_u32 v5, v0, 2, 2\nv_or_b32 v4, v4, v5\nv_xor_b32 v4, v4, v3")
        a("v_lshlrev_b32 v4, 4, v4\nv_lshl_add_u32 v4, v2, 10, v4\nv_add_u32 v96, s66, v4")
        for jj in range(1, 8): a(f"v_xor_b32 v{96+jj}, {jj*32}, v96")
        a(f"v_add_u32 v104, {QL}, v1")
        a("s_waitcnt vmcnt(0)")
        self.stamp(1)
        a("s_barrier\ns_barrier")
        self.stamp(5)
        NF = 7
        def rd(j):
            b = 32 + 8 * (j % 8)
            a(f"ds_read_b128 {vr(b)}, v{96+(j&7)} offset:{(j>>3)*256}\nds_read_b128 {vr(b+4)}, v104 offset:{j*1024}")
        for j in range(NF): rd(j)
        for j in range(32):
            b = 32 + 8 * (j % 8)
            a(f"s_waitcnt lgkmcnt({2*min(NF-1, 31-j)})")
            a(f"v_mfma_f32_32x32x16_bf16 v[16:31], {vr(b)}, {vr(b+4)}, {'0' if j==0 else 'v[16:31]'}")
            if j + NF < 32: rd(j + NF)
        a("s_barrier")
        a(f"v_lshlrev_b32 v6, 4, v2\nv_add_u32 v6, {QL}, v6\ns_lshl_b32 s64, {U}, 2\nv_add_u32 v7, s64, v6")
        a("v_max3_f32 v8, v16, v17, v18")
        for i in range(19, 31, 2): a(f"v_max3_f32 v8, v8, v{i}, v{i+1}")
        a("v_max_f32 v8, v8, v31")
        self.xreduce("v_max_f32", 8, 9, steps=(32,))
        a(f"ds_write_b32 v7, v8 offset:{MX-QL}\ns_waitcnt lgkmcnt(0)\ns_barrier")
        a(f"ds_read_b128 v[8:11], v6 offset:{MX-QL}\ns_lshl_b32 s64, {U}, 11\nv_add_u32 v104, s64, v104\ns_waitcnt lgkmcnt(0)")
        a(f"v_max3_f32 v8, v8, v9, v10\nv_max_f32 v8, v8, v11\nv_mul_f32 v15, {SC}, v8")
        for gg in range(2):
            for i in range(8): a(f"v_fma_f32 v{16+8*gg+i}, v{16+8*gg+i}, {SC}, -v15")
            for i in range(8): a(f"v_exp_f32 v{16+8*gg+i}, v{16+8*gg+i}")
            for i in range(4): a(f"v_cvt_pk_bf16_f32 v{32+4*gg+i}, v{16+8*gg+2*i}, v{17+8*gg+2*i}")
            a(f"ds_write_b128 v104, {vr(32+4*gg)} offset:{gg*1024}")
        for st in (8, 4, 2):
            for i in range(0, st, 2): a(f"v_pk_add_f32 {vr(16+i,2)}, {vr(16+i,2)}, {vr(16+i+st,2)}")
        a("v_add_f32 v8, v16, v17")
        self.xreduce("v_add_f32", 8, 9, steps=(32,))
        a(f"ds_write_b32 v7, v8 offset:{LS-QL}")
        a.flush(); a.label("L_pv")
        a("s_nop 1")
        a("v_bfe_u32 v21, v0, 2, 2\nv_lshrrev_b32 v22, 5, v0")
        a("v_lshl_add_u32 v23, v22, 2, v21\nv_lshlrev_b32 v23, 10, v23")
        a("v_lshl_or_b32 v24, v21, 2, v22")
        a("v_bfe_u32 v25, v0, 4, 1\nv_bfe_u32 v26, v0, 1, 1\nv_lshl_or_b32 v25, v25, 1, v26\ns_lshl_b32 s64, s3, 2\nv_or_b32 v25, s64, v25")
        a("v_xor_b32 v25, v25, v24\nv_lshl_add_u32 v8, v25, 4, v23\nv_and_b32 v26, 1, v0\nv_lshl_add_u32 v8, v26, 3, v8")
        a(f"v_xor_b32 v9, 32, v8\nv_add_u32 v9, 8192, v9\nv_add_u32 v10, 0x10000, v8\nv_add_u32 v11, 0x10000, v9\nv_add_u32 v12, {PL}, v1")
        a("s_waitcnt lgkmcnt(0)\ns_barrier")
        self.stamp(6)
        def rdp(T):
            b = 32 + 8 * (T % 4)
            a(f"ds_read_b64_tr_b16 {vr(b,2)}, v{8+2*(T>>2)} offset:{(T&3)*16384}")
            a(f"ds_read_b64_tr_b16 {vr(b+2,2)}, v{9+2*(T>>2)} offset:{(T&3)*16384}")
            a(f"ds_read_b128 {vr(b+4)}, v12 offset:{T*1024}")
        for T in range(4): rdp(T)
        skip = a.newlabel("L_skipw")
        a(f"s_cmp_ge_u32 s3, 12\ns_cbranch_scc1 {skip}")
        wload(4, 8)
        a.label(skip)
        for T in range(8):
            b = 32 + 8 * (T % 4)
            a(f"s_waitcnt lgkmcnt({3*min(3,7-T)})")
            a(f"v_mfma_f32_32x32x16_bf16 v[16:31], {vr(b)}, {vr(b+4)}, {'0' if T==0 else 'v[16:31]'}")
            if T + 4 < 8: rdp(T + 4)
        a(f"v_and_b32 v4, 31, v0\nv_mul_u32_u24 v4, {OSTR}, v4\nv_lshrrev_b32 v5, 5, v0\nv_lshl_add_u32 v4, v5, 3, v4\ns_lshl_b32 s64, s3, 6\nv_add_u32 v4, s64, v4")
        a(f"s_mul_i32 s64, s3, {2*OSTR}\nv_add_u32 v5, s64, v1")
        a("v_lshrrev_b32 v3, 4, v0\nv_and_b32 v2, 15, v0\nv_lshlrev_b32 v6, 15, v3\nv_lshl_add_u32 v6, v2, 4, v6")
        a(f"s_lshl_b32 s64, s3, 18\ns_lshl_b32 s65, s2, 8\ns_add_u32 s64, s64, s65\ns_add_u32 s64, s64, {LAT}\ns_add_u32 s65, s64, 131072")
        a("s_barrier")
        for q in range(4):
            a(f"v_cvt_pk_bf16_f32 v{32+2*q}, v{16+4*q}, v{17+4*q}\nv_cvt_pk_bf16_f32 v{33+2*q}, v{18+4*q}, v{19+4*q}")
            a(f"ds_write_b64 v4, {vr(32+2*q,2)} offset:{q*16}")
        a("s_waitcnt lgkmcnt(0)\ns_barrier")
        self.stamp(7)
        a(f"ds_read_b128 v[32:35], v5\nds_read_b128 v[36:39], v5 offset:{OSTR}")
        a(f"v_and_b32 v7, 31, v0\nv_lshlrev_b32 v8, 4, v7\nv_add_u32 v8, {LS}, v8\nds_read_b128 v[40:43], v8")
        a(f"s_waitcnt lgkmcnt(2)\nbuffer_store_dwordx4 v[32:35], v6, {WS}, s64 offen sc1\ns_waitcnt lgkmcnt(1)\nbuffer_store_dwordx4 v[36:39], v6, {WS}, s65 offen sc1")
        skip = a.newlabel("L_skipw")
        a(f"s_lshr_b32 s66, s3, 2\ns_mul_i32 s66, s66, {128*WSTR}\ns_add_u32 s66, s66, {WB}")
        a(f"s_cmp_ge_u32 s3, 12\ns_cbranch_scc1 {skip}")
        a(f"v_mul_u32_u24 v9, {8*WSTR}, v3\nv_lshl_add_u32 v9, v2, 4, v9\ns_mul_i32 s64, {U}, {32*WSTR}\ns_add_u32 s64, s64, s66\nv_add_u32 v9, s64, v9")
        a("s_waitcnt vmcnt(2)")
        for e in range(8): a(f"ds_write_b128 v9, {vr(96+4*e)} offset:{e*WSTR}")
        a.label(skip)
        a(f"s_waitcnt lgkmcnt(0)\nv_pk_add_f32 v[40:41], v[40:41], v[42:43]\nv_mov_b32 v44, v15\nv_mov_b32 v45, {TAG}\nv_mov_b32 v47, {TAG}\nv_add_f32 v46, v40, v41")
        a(f"v_lshlrev_b32 v7, 11, v7\ns_lshl_b32 s64, s2, 4\ns_add_u32 s64, s64, {MLB}")
        a("s_waitcnt vmcnt(0)\ns_barrier")
        skip = a.newlabel("L_skipml")
        a(f"s_cmp_lg_u32 s3, 12\ns_cbranch_scc1 {skip}")
        a(f"s_mov_b32 exec_hi, 0\nbuffer_store_dwordx4 v[44:47], v7, {WS}, s64 offen sc1\ns_mov_b64 exec, -1")
        a.label(skip)
        self.stamp(8)
        skip = a.newlabel("L_skipw")
        a(f"s_cmp_ge_u32 s3, 12\ns_cbranch_scc1 {skip}")
        a(f"v_bfe_u32 v9, v0, 2, 2\nv_lshl_add_u32 v9, v3, 3, v9\nv_mul_u32_u24 v9, {WSTR}, v9\nv_and_b32 v10, 3, v0\nv_lshl_add_u32 v9, v10, 3, v9\ns_lshl_b32 s64, {U}, 6\ns_add_u32 s64, s64, s66\nv_add_u32 v9, s64, v9")
        for ct in range(2):
            for ks in range(4):
                for t in range(2):
                    a(f"ds_read_b64_tr_b16 {vr(96+(ct*4+ks)*4+2*t,2)}, v9 offset:{(32*ks+4*t)*WSTR+32*ct}")
        a.label(skip)
        a(f"s_lshr_b32 s65, s3, 3\ns_lshl_b32 s65, s65, 10\ns_lshl_b32 s64, {H}, 11\ns_add_u32 s64, s64, s65\ns_add_u32 s64, s64, {MLB}")
        a(f"s_lshl_b32 s65, {H}, 2\ns_add_u32 s65, s65, {Q}\ns_lshl_b32 s65, s65, 15\ns_lshl_b32 s66, s3, 11\ns_add_u32 s65, s65, s66\ns_add_u32 s65, s65, {LAT}")
        a("s_and_b32 s66, s3, 7\ns_lshl_b32 s66, s66, 5\nv_lshlrev_b32 v4, 2, v3\nv_add_u32 v4, s66, v4")
        a("s_mul_i32 s66, s3, 272\nv_lshlrev_b32 v5, 4, v2\nv_lshl_add_u32 v5, v3, 2, v5\nv_add_u32 v5, s66, v5")
        a("v_mul_u32_u24 v6, 272, v2\nv_lshl_add_u32 v3, v3, 4, v6")
        a(f"v_mov_b32 v29, {TAG}")
        self.poll([f"buffer_load_dwordx4 v[8:11], v1, {WS}, s64 offen sc1"], [9, 11], sleep=4)
        for i in range(2): a(f"buffer_load_dwordx4 {vr(32+4*i)}, v1, {WS}, s65 offen offset:{i*1024} sc1")
        self.stamp(9)
        self.dpp_reduce("v_max_f32", 12, 8, 4); self.xreduce("v_max_f32", 12, 15)
        a("v_sub_f32 v13, v8, v12\nv_exp_f32 v13, v13\nv_mul_f32 v14, v13, v10")
        self.dpp_reduce("v_add_f32", 14, 14, 4); self.xreduce("v_add_f32", 14, 15)
        a("v_rcp_f32 v14, v14\nv_mul_f32 v13, v13, v14")
        a("ds_bpermute_b32 v8, v4, v13\nds_bpermute_b32 v9, v4, v13 offset:16\ns_waitcnt lgkmcnt(0)")
        for i in range(2):
            a(f"s_waitcnt vmcnt({1-i})")
            for d in range(4):
                a(f"v_lshlrev_b32 v24, 16, v{32+4*i+d}\nv_and_b32 v25, 0xffff0000, v{32+4*i+d}")
                if i == 0: a(f"v_mul_f32 v{16+2*d}, v8, v24\nv_mul_f32 v{17+2*d}, v8, v25")
                else: a(f"v_fmac_f32 v{16+2*d}, v9, v24\nv_fmac_f32 v{17+2*d}, v9, v25")
        for e in range(4): a(f"v_permlane32_swap_b32 v{16+e}, v{20+e}")
        for e in range(4): a(f"v_add_f32 v{16+e}, v{16+e}, v{20+e}")
        for e in range(2): a(f"v_permlane16_swap_b32 v{16+e}, v{18+e}")
        for e in range(2): a(f"v_add_f32 v{16+e}, v{16+e}, v{18+e}")
        a(f"v_cvt_pk_bf16_f32 v16, v16, v17\nds_write_b32 v5, v16 offset:{VEC1}")
        a("v_lshrrev_b32 v7, 5, v0\nv_lshlrev_b32 v6, 10, v7\nv_and_b32 v8, 31, v0\nv_lshl_add_u32 v6, v8, 3, v6")
        a("v_lshlrev_b32 v7, 17, v7\nv_bfe_u32 v8, v0, 4, 1\nv_lshl_add_u32 v7, v8, 12, v7\nv_lshl_add_u32 v7, v2, 3, v7")
        a(f"s_lshl_b32 s67, {Q}, 2\ns_add_u32 s67, s67, {U}\ns_lshl_b32 s67, s67, 6\ns_add_u32 s67, s67, {H}\ns_lshl_b32 s67, s67, 7")
        a(f"s_lshl_b32 s60, {H}, 13\ns_add_u32 s60, s60, {CTXP}")
        a("s_waitcnt lgkmcnt(0)\ns_barrier")
        skip = a.newlabel("L_skipp")
        a(f"s_cmp_ge_u32 s3, 4\ns_cbranch_scc1 {skip}")
        self.proj(VEC1, False, True)
        a(f"s_lshl_b32 s64, {Q}, 11\ns_add_u32 s64, s64, s60\ns_lshl_b32 s65, {U}, 8\ns_add_u32 s64, s64, s65")
        a(f"buffer_store_dwordx2 v[28:29], v6, {WS}, s64 offen sc1")
        a.label(skip)
        self.stamp(10)
        skip = a.newlabel("L_skipp")
        a(f"s_cmp_ge_u32 s3, 8\ns_cbranch_scc1 {skip}")
        a(f"s_lshl_b32 s64, {U}, 11\ns_add_u32 s64, s64, s60\ns_lshr_b32 s65, s3, 2\ns_lshl_b32 s66, s65, 10\ns_add_u32 s64, s64, s66")
        a(f"s_lshl_b32 s65, s65, 3\ns_add_u32 s65, s65, {U}\ns_mul_i32 s65, s65, 272\nv_lshlrev_b32 v5, 2, v0\nv_add_u32 v5, s65, v5")
        self.poll([f"buffer_load_dwordx4 v[8:11], v1, {WS}, s64 offen sc1"], [9, 11], sleep=1)
        a(f"v_cvt_pk_bf16_f32 v8, v8, v10\nds_write_b32 v5, v8 offset:{VEC2}\ns_waitcnt lgkmcnt(0)")
        a.label(skip)
        a("s_barrier")
        skip = a.newlabel("L_skipp")
        a(f"s_lshr_b32 s64, s3, 2\ns_cmp_lg_u32 s64, 1\ns_cbranch_scc1 {skip}")
        self.proj(VEC2, False, False)
        a(f"s_add_u32 s64, s67, {OUTP_B}\nbuffer_store_dwordx2 v[28:29], v7, {WS}, s64 offen sc1")
        a.label(skip)
        skip = a.newlabel("L_skipf")
        a(f"s_cmp_lg_u32 s3, 12\ns_cbranch_scc1 {skip}\ns_cmp_lt_u32 s2, 64\ns_cbranch_scc1 {skip}\ns_sub_u32 s60, s2, 64")
        self.final_stage(OUTP_B, 1, "s60")
        a.label(skip)
        self.stamp(11)
        skip = a.newlabel("L_skipa")
        a(f"s_lshr_b32 s64, s3, 2\ns_cmp_lg_u32 s64, 2\ns_cbranch_scc1 {skip}")
        a(f"v_and_b32 v2, 15, v0\nv_lshlrev_b32 v4, 4, v2\ns_lshl_b32 s64, {H}, 8\ns_add_u32 s64, s64, {MLA}")
        self.poll([f"buffer_load_dwordx4 v[8:11], v4, {WS}, s64 offen sc1"], [9, 11], sleep=8)
        self.dpp_reduce("v_max_f32", 12, 8, 3)
        a("v_sub_f32 v13, v8, v12\nv_exp_f32 v13, v13\nv_mul_f32 v14, v13, v10")
        self.dpp_reduce("v_add_f32", 14, 14, 3)
        a("v_rcp_f32 v14, v14\nv_mul_f32 v13, v13, v14")
        a(f"s_lshl_b32 s64, {U}, 6\ns_add_u32 s64, s64, {WSCR}\nv_lshlrev_b32 v4, 2, v2\nv_add_u32 v4, s64, v4\nds_write_b32 v4, v13")
        a("v_lshrrev_b32 v4, 4, v0\nv_lshlrev_b32 v4, 4, v4\nv_add_u32 v4, s64, v4\nds_read_b128 v[24:27], v4")
        a.label(skip)
        a(f"v_lshlrev_b32 v4, 3, v0\ns_lshl_b32 s64, {H}, 13\ns_lshl_b32 s65, s3, 9\ns_add_u32 s64, s64, s65\ns_add_u32 s64, s64, {OPART}")
        a("s_mul_i32 s65, s3, 272\nv_lshlrev_b32 v5, 2, v0\nv_add_u32 v5, s65, v5")
        self.poll([f"buffer_load_dwordx2 v[8:9], v4, {WS}, s64 offen sc1"], [9], sleep=self.o.get("tailsleep", 1))
        a(f"ds_write_b32 v5, v8 offset:{VEC3}\ns_waitcnt lgkmcnt(0)\ns_barrier")
        self.stamp(12)
        skip = a.newlabel("L_skipp")
        a(f"s_lshr_b32 s64, s3, 2\ns_cmp_lg_u32 s64, 2\ns_cbranch_scc1 {skip}")
        self.proj(VEC3, True, True)
        a(f"s_add_u32 s64, s67, {OUTP_A}\nbuffer_store_dwordx2 v[28:29], v7, {WS}, s64 offen sc1")
        a.label(skip)
        end = a.newlabel("L_nend")
        a(f"s_cmp_lg_u32 s3, 12\ns_cbranch_scc1 {end}\ns_cmp_ge_u32 s2, 64\ns_cbranch_scc1 {end}")
        self.final_stage(OUTP_A, 0, "s2")
        a(f"s_cmp_lg_u32 s2, 0\ns_cbranch_scc1 {end}")
        a(f"s_mov_b64 exec, 1\nv_mov_b32 v3, {TAG}\nv_mov_b32 v4, 0\nbuffer_store_dword v3, v4, {WS}, 0 offen offset:{EPOCH} sc1\ns_mov_b64 exec, -1")
        a.label(end)
        self.finish()

    def role_aatt(self):
        a = self.a; a.flush(); a.label("L_aatt")
        MX, LS, QV, RED = 0, 256, 1024, 2048
        a("s_sub_u32 s61, s2, 128")
        a("v_bfe_u32 v3, v0, 2, 2\nv_lshlrev_b32 v2, 8, v3\nv_lshrrev_b32 v4, 4, v0\nv_lshl_add_u32 v2, v4, 6, v2\nv_and_b32 v5, 3, v0\nv_lshl_add_u32 v2, v5, 4, v2\nv_lshlrev_b32 v1, 4, v0")
        a("s_lshl_b32 s60, s61, 18\ns_lshl_b32 s64, s3, 14\ns_add_u32 s60, s60, s64\ns_add_u32 s65, s60, 4096\ns_add_u32 s68, s60, 8192\ns_add_u32 s67, s60, 12288")
        so = ["s60", "s65", "s68", "s67"]
        a("s_waitcnt lgkmcnt(0)")
        self.epoch()
        self.srd(R1, P_K, 32 << 20); self.srd(R2, P_V, 32 << 20); self.srd(WS, P_WS, WS_BYTES)
        d = self.o.get("kdepth", 0)
        for i in range(16):
            a(f"buffer_load_dwordx4 {vr(64+4*i)}, v2, {R1}, {so[i>>2]} offen offset:{(i&3)*1024} nt")
            if d and i + 1 >= d: a(f"s_waitcnt vmcnt({d-1})")
        a(f"s_bfe_u32 s64, s61, 0x30003\ns_lshl_b32 s64, s64, 2\ns_add_u32 s64, s64, s3\ns_lshl_b32 s64, s64, 13\ns_lshr_b32 s66, s61, 6\ns_lshl_b32 s66, s66, 10\ns_add_u32 s64, s64, s66\ns_add_u32 s64, s64, {QAP}\ns_add_u32 s66, s64, 4096")
        self.tag_ready()
        for v in range(4):
            a(f"s_mov_b32 s{44+2*v}, {hex(0x11111111<<v)}\ns_mov_b32 s{45+2*v}, {hex(0x11111111<<v)}")
        a("s_barrier")
        def v0loads():
            for e in range(8): a(f"buffer_load_dwordx4 {vr(32+4*e)}, v1, {R2}, {so[e>>2]} offen offset:{(e&3)*1024} nt")
        nq, join = a.newlabel("L_nq"), a.newlabel("L_join")
        a(f"s_cmp_ge_u32 s3, 4\ns_cbranch_scc1 {nq}")
        self.gather4(16, only_issue=True)
        v0loads()
        a(f"s_lshl_b32 s69, s3, 8\ns_add_u32 s69, s69, {QV}\nv_lshlrev_b32 v6, 2, v0\nv_add_u32 v6, s69, v6")
        self.gather4(16, first_wait=8, issued=True, sleep=8)
        a(f"ds_write_b32 v6, v16\ns_waitcnt lgkmcnt(0)\ns_branch {join}")
        a.label(nq)
        v0loads()
        a.label(join)
        self.stamp(1)
        a(f"s_barrier\nds_read_b128 v[8:11], v2 offset:{QV}\ns_waitcnt vmcnt(8) lgkmcnt(0)")
        self.stamp(2)
        for i in range(16): a(f"v_mfma_f32_16x16x32_bf16 {vr(64+4*i)}, {vr(64+4*i)}, v[8:11], 0")
        for g in range(4):
            self.diag_sum([(64 + 4 * i, 16 + i) for i in range(4*g, 4*g+4)])
            for i in range(4*g, 4*g+4):
                if i < 8: a(f"buffer_load_dwordx4 {vr(64+4*i)}, v1, {R2}, {so[2+(i>>2)]} offen offset:{(i&3)*1024} nt")
        a("v_max3_f32 v8, v16, v17, v18")
        for i in range(19, 31, 2): a(f"v_max3_f32 v8, v8, v{i}, v{i+1}")
        a("v_max_f32 v8, v8, v31")
        self.xreduce("v_max_f32", 8, 9)
        a(f"v_lshlrev_b32 v6, 6, v3\ns_lshl_b32 s64, s3, 2\nv_add_u32 v7, s64, v6\nds_write_b32 v7, v8 offset:{MX}\ns_waitcnt lgkmcnt(0)\ns_barrier")
        for q in range(4): a(f"ds_read_b128 {vr(96+4*q)}, v6 offset:{MX+16*q}")
        a("s_waitcnt lgkmcnt(0)\nv_max3_f32 v8, v96, v97, v98")
        for i in range(99, 111, 2): a(f"v_max3_f32 v8, v8, v{i}, v{i+1}")
        a(f"v_max_f32 v8, v8, v111\nv_mul_f32 v4, {SC}, v8")
        for i in range(16): a(f"v_fma_f32 v{16+i}, v{16+i}, {SC}, -v4")
        for i in range(16): a(f"v_exp_f32 v{16+i}, v{16+i}")
        for i in range(8): a(f"v_cvt_pk_bf16_f32 v{8+i}, v{16+2*i}, v{17+2*i}")
        for st in (8, 4, 2):
            for i in range(0, st, 2): a(f"v_pk_add_f32 {vr(16+i,2)}, {vr(16+i,2)}, {vr(16+i+st,2)}")
        a("v_add_f32 v16, v16, v17")
        self.xreduce("v_add_f32", 16, 17)
        a(f"ds_write_b32 v7, v16 offset:{LS}")
        for blk in range(2):
            for v in range(4):
                for t in range(4): a(f"v_cndmask_b32 v{96+16*blk+4*v+t}, 0, v{8+4*blk+t}, s[{44+2*v}:{45+2*v}]")
        a("s_waitcnt lgkmcnt(0)\ns_barrier")
        self.stamp(3)
        skip = a.newlabel("L_skipml")
        a(f"s_cmp_lg_u32 s3, 0\ns_cbranch_scc1 {skip}")
        for q in range(4): a(f"ds_read_b128 {vr(16+4*q)}, v6 offset:{LS+16*q}")
        a(f"s_bfe_u32 s64, s61, 0x30003\ns_lshl_b32 s64, s64, 10\ns_lshr_b32 s68, s61, 6\ns_lshl_b32 s68, s68, 3\ns_and_b32 s69, s61, 7\ns_add_u32 s68, s68, s69\ns_lshl_b32 s68, s68, 4\ns_add_u32 s64, s64, s68\ns_add_u32 s64, s64, {MLA}")
        a("v_lshlrev_b32 v5, 8, v3\ns_waitcnt lgkmcnt(0)")
        for st in (8, 4, 2):
            for i in range(0, st, 2): a(f"v_pk_add_f32 {vr(16+i,2)}, {vr(16+i,2)}, {vr(16+i+st,2)}")
        a(f"v_add_f32 v22, v16, v17\nv_mov_b32 v20, v4\nv_mov_b32 v21, {TAG}\nv_mov_b32 v23, {TAG}")
        a(f"s_mov_b64 exec, 0x1111\nbuffer_store_dwordx4 v[20:23], v5, {WS}, s64 offen sc1\ns_mov_b64 exec, -1\ns_nop 1")
        a.label(skip)
        a(f"v_lshlrev_b32 v5, 5, v0\ns_lshl_b32 s64, s3, 11\ns_add_u32 s64, s64, {RED}\nv_add_u32 v5, s64, v5")
        a(f"v_lshlrev_b32 v6, 3, v0\ns_lshl_b32 s64, s3, 9\ns_add_u32 s64, s64, {RED}\nv_add_u32 v7, s64, v6")
        a(f"s_bfe_u32 s64, s61, 0x30003\ns_lshl_b32 s64, s64, 2\ns_add_u32 s64, s64, s3\ns_lshl_b32 s64, s64, 13\ns_lshr_b32 s68, s61, 6\ns_lshl_b32 s68, s68, 3\ns_and_b32 s69, s61, 7\ns_add_u32 s68, s68, s69\ns_lshl_b32 s68, s68, 9\ns_add_u32 s64, s64, s68\ns_add_u32 s64, s64, {OPART}")
        for blk in range(2):
            a(f"s_waitcnt vmcnt({8 if blk==0 else 0})")
            if blk == 1: self.stamp(4)
            W = 32 + 32 * blk
            for ep in range(8):
                t = 16 + 4 * (ep % 4)
                self.perm_frag(W, ep, t)
                D = 8 + 4 * (ep >> 2)
                first = (blk == 0 and (ep & 3) == 0)
                a(f"v_mfma_f32_16x16x32_bf16 {vr(D)}, {vr(96+16*blk+4*(ep&3))}, {vr(t)}, {'0' if first else vr(D)}")
        a("ds_write_b128 v5, v[8:11]\nds_write_b128 v5, v[12:15] offset:16\ns_waitcnt lgkmcnt(0)\ns_barrier")
        end = a.newlabel("L_aend")
        a(f"s_cmp_ge_u32 s3, 4\ns_cbranch_scc1 {end}")
        for w in range(16): a(f"ds_read_b64 {vr(32+2*w,2)}, v7 offset:{w*2048}")
        a(f"v_mov_b32 v9, {TAG}\ns_waitcnt lgkmcnt(0)")
        for st in (16, 8, 4, 2):
            for i in range(0, st, 2): a(f"v_pk_add_f32 {vr(32+i,2)}, {vr(32+i,2)}, {vr(32+i+st,2)}")
        a(f"v_cvt_pk_bf16_f32 v8, v32, v33\nbuffer_store_dwordx2 v[8:9], v6, {WS}, s64 offen sc1")
        a.label(end)
        self.finish()

    def build(self):
        a = self.a
        hdr = open("cdna_kernels/" + NAME + ".s.ref").read().split("; @launch")[0]
        a.raw(hdr.rstrip("\n"))
        a.raw("; @launch grid=(256,1,1) block=(1024,1,1) lds=163840")
        a.raw('.amdgcn_target "amdgcn-amd-amdhsa--gfx950"\n.text\n.globl %s_kernel\n.p2align 8\n.type %s_kernel,@function\n%s_kernel:' % (NAME, NAME, NAME))
        if self.stamps or self.o.get("dbgspan") or self.o.get("amp"): a("s_memrealtime s[72:73]")
        a("s_cmp_ge_u32 s2, 256\ns_cbranch_scc1 L_exit")
        a("s_load_dwordx16 s[4:19], s[0:1], 0\ns_load_dwordx8 s[20:27], s[0:1], 64\ns_load_dwordx4 s[28:31], s[0:1], 96")
        a("v_lshrrev_b32 v1, 6, v0\nv_and_b32 v0, 63, v0\nv_readfirstlane_b32 s3, v1")
        a(f"s_mov_b32 {SELLO}, 0x05040100\ns_mov_b32 {SELHI}, 0x07060302\ns_mov_b32 {SC}, {hex(SCALE_BITS)}")
        self.stamp_init()
        a("s_cmp_lt_u32 s2, 128\ns_cbranch_scc1 L_n\ns_branch L_aatt")
        a.label("L_exit"); a("s_endpgm")
        self.role_aatt(); self.role_n()
        a.raw('.section .rodata,"a"\n.p2align 6\n.amdhsa_kernel %s_kernel' % NAME)
        a.raw("  .amdhsa_next_free_vgpr 128\n  .amdhsa_next_free_sgpr 100\n  .amdhsa_accum_offset 128\n  .amdhsa_group_segment_fixed_size 0\n  .amdhsa_kernarg_size 112\n  .amdhsa_user_sgpr_count 2\n  .amdhsa_user_sgpr_kernarg_segment_ptr 1\n  .amdhsa_system_sgpr_workgroup_id_x 1\n.end_amdhsa_kernel")
        return a.text()

if __name__ == "__main__":
    out = sys.argv[1]; o = {}
    for x in sys.argv[2:]:
        if x == "--stamps": o["stamps"] = True
        else:
            k, v = x.split("="); o[k] = int(v)
    open(out, "w").write(Gen(**o).build())
```

```python
import sys, math, struct
sys.path.insert(0, "gen")
from asmlib import Asm

NAME = "concat_heads__gqa_block_cached__compressed_kv_cla__decode"
EPOCH = 0x0
QABS, MLA, MLB = 0x20000, 0x40000, 0x50000
QAP, QBP, CTXP, OPART, OUTP_A, OUTP_B, LAT = 0x80000, 0xC0000, 0x100000, 0x140000, 0x180000, 0x1C0000, 0x200000
STAMP = 0x1000000
DUAL = 0x800000
WS_BYTES = 0x10000000
SPIN = 20000
DPP = "row_mask:0xf bank_mask:0xf"
SCALE = math.log2(math.e) / math.sqrt(128.0)
SCALE_BITS = struct.unpack("<I", struct.pack("<f", SCALE))[0]

P_AX, P_K, P_V, P_WQ, P_WO, P_BX, P_C, P_BWQ, P_UK, P_UV, P_BWO, P_OUT, P_DBG, P_WS = 4, 6, 8, 10, 12, 14, 16, 18, 20, 22, 24, 26, 28, 30
WS, R1, R2, R3, R4, R5 = "s[32:35]", "s[36:39]", "s[40:43]", "s[44:47]", "s[48:51]", "s[52:55]"
TAG, CNT, SELLO, SELHI, SC = "s56", "s57", "s58", "s59", "s71"
H, Q, U = "s61", "s68", "s69"

def vr(a, n=4): return f"v[{a}:{a+n-1}]"
def fsw(i): return ((i & 3) << 2) | ((i >> 2) & 3)

class Gen:
    def __init__(self, stamps=False, **o):
        self.a = Asm(); self.stamps = stamps; self.o = o
    def srd(self, name, ptr, nbytes):
        b = int(name[2:].split(":")[0])
        self.a(f"s_mov_b32 s{b}, s{ptr}\ns_mov_b32 s{b+1}, s{ptr+1}\ns_mov_b32 s{b+2}, {hex(nbytes)}\ns_mov_b32 s{b+3}, 0x20000")
    def stamp(self, i):
        if self.stamps:
            self.a(f"s_memrealtime s[{72+2*i}:{73+2*i}]\ns_waitcnt lgkmcnt(0)")
    def stamp_init(self):
        if self.stamps:
            for i in range(2, 28): self.a(f"s_mov_b32 s{72+i}, 0")
    def finish(self):
        a = self.a
        if self.stamps:
            self.stamp(13)
            a("s_mov_b64 exec, 1")
            a(f"s_lshl_b32 s60, s2, 4\ns_add_u32 s60, s60, s3\ns_lshl_b32 s60, s60, 7\ns_add_u32 s60, s60, {STAMP}")
            a("v_mov_b32 v1, 0")
            for q in range(7):
                for i in range(4): a(f"v_mov_b32 v{4+i}, s{72+4*q+i}")
                a(f"buffer_store_dwordx4 v[4:7], v1, {WS}, s60 offen offset:{16*q}")
                a("s_nop 1")
            a("s_waitcnt vmcnt(0)")
        if self.o.get("amp"):
            L = a.newlabel("L_amp")
            a("s_cmp_lg_u32 s3, 12\ns_cbranch_scc1 L_exit\ns_cmp_ge_u32 s2, 8\ns_cbranch_scc1 L_exit")
            a(f"s_memrealtime s[74:75]\ns_waitcnt lgkmcnt(0)\ns_sub_u32 s76, s74, s72\ns_mul_i32 s76, s76, {self.o['amp']}")
            a.label(L)
            a(f"s_memrealtime s[78:79]\ns_waitcnt lgkmcnt(0)\ns_sub_u32 s77, s78, s74\ns_cmp_lt_u32 s77, s76\ns_cbranch_scc1 {L}")
        if self.o.get("dbgspan"):
            a("s_cmp_lg_u32 s3, 12\ns_cbranch_scc1 L_exit\ns_cmp_ge_u32 s2, 64\ns_cbranch_scc1 L_exit")
            a("s_memrealtime s[74:75]")
            self.srd(R5, P_DBG, 256)
            a("s_waitcnt lgkmcnt(0)\ns_mov_b64 exec, 1\ns_not_b32 s72, s72\nv_mov_b32 v1, 0\nv_mov_b32 v4, s74\nv_mov_b32 v5, s72")
            a(f"buffer_atomic_umax v4, v1, {R5}, 0 offen sc1\nbuffer_atomic_umax v5, v1, {R5}, 0 offen offset:4 sc1\ns_waitcnt vmcnt(0)")
        a("s_endpgm")
    def epoch(self):
        self.a(f"s_load_dword {TAG}, s[{P_WS}:{P_WS+1}], {EPOCH}")
    def tag_ready(self):
        self.a(f"s_waitcnt lgkmcnt(0)\ns_mul_i32 {TAG}, {TAG}, 1664525\ns_add_u32 {TAG}, {TAG}, 1013904223")
    def st2(self, fmt, soff):
        a = self.a
        if self.o.get("dual", 1): a(fmt.format(so=soff))
        a(f"s_add_u32 s53, {soff}, {DUAL}")
        a(fmt.format(so="s53") + " sc1")
    def poll(self, loads, tagregs, first_wait=None, issued=False, sleep=2, dual=None):
        a = self.a
        L, OK, CHK = a.newlabel("L_poll"), a.newlabel("L_ok"), a.newlabel("L_chk")
        a(f"s_mov_b32 {CNT}, {(SPIN*8+7) if dual else SPIN}")
        if issued:
            a(f"s_waitcnt vmcnt({first_wait})\ns_branch {CHK}")
        a.label(L)
        if dual:
            if self.o.get("dual", 1): a(f"s_and_b32 s53, {CNT}, 7\ns_cselect_b32 s53, 0, {DUAL}\ns_add_u32 s52, {dual}, s53")
            else: a(f"s_add_u32 s52, {dual}, {DUAL}")
        for l in loads: a(l)
        a("s_waitcnt vmcnt(0)")
        a.label(CHK)
        for i, t in enumerate(tagregs):
            if i == 0: a(f"v_cmp_ne_u32 vcc, {TAG}, v{t}")
            else: a(f"v_cmp_ne_u32 s[62:63], {TAG}, v{t}\ns_or_b64 vcc, vcc, s[62:63]")
        a(f"s_cmp_eq_u64 vcc, 0\ns_cbranch_scc1 {OK}")
        if sleep: a(f"s_sleep {sleep}")
        a(f"s_sub_u32 {CNT}, {CNT}, 1\ns_cmp_lg_u32 {CNT}, 0\ns_cbranch_scc1 {L}")
        a.label(OK)
    def lds_signal(self, addr, ta=6, tb=7):
        self.a(f"v_mov_b32 v{ta}, {addr}\nv_mov_b32 v{tb}, 1\ns_mov_b64 exec, 1\nds_add_u32 v{ta}, v{tb}\ns_mov_b64 exec, -1")
    def lds_wait(self, addr, n, reads=(), ta=6, tb=7, sleep=1):
        a = self.a
        L, OK, SL = a.newlabel("L_lw"), a.newlabel("L_lok"), a.newlabel("L_lsl")
        a(f"s_mov_b32 {CNT}, {SPIN*20}\nv_mov_b32 v{ta}, {addr}")
        if reads:
            a.label(L)
            a(f"ds_read_b32 v{tb}, v{ta}")
            for r in reads: a(r)
            a(f"s_waitcnt lgkmcnt({min(len(reads),15)})\nv_readfirstlane_b32 s62, v{tb}\ns_cmp_ge_u32 s62, {n}\ns_cbranch_scc1 {OK}")
        a.label(SL)
        a(f"ds_read_b32 v{tb}, v{ta}\ns_waitcnt lgkmcnt(0)\nv_readfirstlane_b32 s62, v{tb}\ns_cmp_ge_u32 s62, {n}\ns_cbranch_scc1 {L if reads else OK}")
        a(f"s_sleep {max(sleep,1)}\ns_sub_u32 {CNT}, {CNT}, 1\ns_cmp_lg_u32 {CNT}, 0\ns_cbranch_scc1 {SL}")
        a.label(OK)
    def perm_frag(self, W, ep, dst):
        for t in range(4):
            self.a(f"v_perm_b32 v{dst+t}, v{W+4*(2*t+1)+(ep>>1)}, v{W+4*(2*t)+(ep>>1)}, {SELHI if ep&1 else SELLO}")
    def diag_sum(self, lst):
        a = self.a
        for D, dst in lst: a(f"v_mov_b32_dpp v{dst}, v{D} quad_perm:[0,0,0,0] {DPP}")
        for i in (1, 2, 3):
            for D, dst in lst: a(f"v_add_f32_dpp v{dst}, v{D+i}, v{dst} quad_perm:[{i},{i},{i},{i}] {DPP}")
    def xreduce(self, op, x, t, steps=(32, 16)):
        for s in steps:
            self.a(f"v_mov_b32 v{t}, v{x}\nv_permlane{s}_swap_b32 v{x}, v{t}\n{op} v{x}, v{x}, v{t}")
    def dpp_reduce(self, op, x, src, n):
        pats = ["quad_perm:[1,0,3,2]", "quad_perm:[2,3,0,1]", "row_half_mirror", "row_mirror"][:n]
        for i, p in enumerate(pats):
            s = src if i == 0 else x
            self.a(f"{op}_dpp v{x}, v{s}, v{s} {p} {DPP}")

    def prefetch(self, key):
        v = self.o.get(key, 0)
        if not v: return
        a = self.a; first, cnt = v // 100, v % 100
        skip = a.newlabel("L_skippf")
        a(f"s_cmp_ge_u32 s3, 8\ns_cbranch_scc1 {skip}")
        self.srd(R4, P_V, 32 << 20)
        a("s_and_b32 s64, s2, 7\ns_lshr_b32 s65, s2, 6\ns_lshl_b32 s65, s65, 3\ns_add_u32 s64, s64, s65\ns_lshl_b32 s64, s64, 3\ns_bfe_u32 s65, s2, 0x30003\ns_add_u32 s64, s64, s65\ns_lshl_b32 s64, s64, 18\ns_lshl_b32 s65, s3, 11\ns_add_u32 s64, s64, s65")
        for i in range(cnt):
            a(f"s_add_u32 s65, s64, {(first+i)*16384}")
            for t in range(2): a(f"buffer_load_dwordx4 {vr(64+8*(i%8)+4*t)}, v1, {R4}, s65 offen offset:{t*1024} {self.o.get('pfpol','nt') if isinstance(self.o.get('pfpol','nt'),str) else ''}")
        a.label(skip)
    QL = 131072
    def proj(self, vec, weights, add, flag=None):
        a = self.a
        rds = [f"ds_read_b128 {vr(32+4*ks)}, v3 offset:{vec+ks*64}" for ks in range(4)]
        if flag is None:
            for r in rds: a(r)
        else: self.lds_wait(flag, 4, rds, ta=48, tb=49, sleep=0)
        for ks in range(4):
            a(f"s_waitcnt lgkmcnt({3-ks})")
            for ct in range(2):
                a(f"v_mfma_f32_16x16x32_bf16 {vr(16+4*ct)}, {vr(32+4*ks)}, {vr(96+(ct*4+ks)*4)}, {'0' if ks==0 else vr(16+4*ct)}")
        if weights:
            for ct in range(2): a(f"v_mul_f32 v{12+ct}, v24, v{16+4*ct}")
            for r in range(1, 4):
                for ct in range(2): a(f"v_fmac_f32 v{12+ct}, v{24+r}, v{16+4*ct+r}")
        else:
            for ct in range(2): a(f"v_pk_add_f32 {vr(16+4*ct,2)}, {vr(16+4*ct,2)}, {vr(18+4*ct,2)}")
            for ct in range(2): a(f"v_add_f32 v{12+ct}, v{16+4*ct}, v{17+4*ct}")
        a("v_permlane16_swap_b32 v12, v13")
        a("v_add_f32 v28, v12, v13" if add else "v_mov_b32 v28, v12")
    def front_q(self, xptr, wptr, red, flag, dst, dual):
        a = self.a
        a("v_lshrrev_b32 v3, 4, v0\nv_lshlrev_b32 v4, 16, v3\nv_and_b32 v2, 15, v0\nv_lshl_add_u32 v4, v2, 4, v4")
        a("v_and_b32 v5, 1, v0\nv_lshlrev_b32 v5, 10, v5\nv_lshl_add_u32 v5, v3, 4, v5")
        a(f"s_lshl_b32 s60, {Q}, 2\ns_add_u32 s60, s60, {U}\ns_lshl_b32 s65, s60, 6\ns_lshl_b32 s60, s60, 18\ns_lshl_b32 s64, {H}, 8\ns_add_u32 s60, s60, s64")
        a("s_waitcnt lgkmcnt(0)")
        self.epoch()
        self.srd(R1, wptr, 4 << 20); self.srd(R2, xptr, 2048); self.srd(WS, P_WS, WS_BYTES)
        a(f"buffer_load_dwordx4 v[8:11], v5, {R2}, s65 offen")
        for e in range(8): a(f"s_add_u32 s64, s60, {e*8192}\nbuffer_load_dwordx4 {vr(32+4*e)}, v4, {R1}, s64 offen nt")
        self.tag_ready()
        a("s_barrier")
        a(f"v_lshlrev_b32 v5, 3, v2\ns_lshl_b32 s64, {U}, 10\ns_add_u32 s64, s64, {red}\nv_add_u32 v5, s64, v5")
        a("s_waitcnt vmcnt(0)")
        self.stamp(1)
        for ep in range(8):
            t = 12 + 4 * (ep % 4)
            self.perm_frag(32, ep, t)
            a(f"v_mfma_f32_16x16x32_bf16 {vr(64+4*ep)}, v[8:11], {vr(t)}, 0")
        a("s_mov_b64 exec, 0xffff")
        for e in range(8): a(f"ds_write_b64 v5, {vr(64+4*e,2)} offset:{e*128}")
        a("s_mov_b64 exec, -1")
        self.lds_signal(flag)
        skip = a.newlabel("L_skipred")
        a(f"s_cmp_ge_u32 {U}, 2\ns_cbranch_scc1 {skip}")
        a(f"v_lshlrev_b32 v4, 8, v3\nv_lshl_add_u32 v4, v2, 3, v4\ns_lshl_b32 s64, {U}, 2\ns_add_u32 s64, s64, {red}\nv_add_u32 v4, s64, v4\nv_add_u32 v5, 128, v4")
        a(f"v_lshlrev_b32 v12, 6, v2\nv_lshl_add_u32 v12, v3, 4, v12\ns_lshl_b32 s64, {H}, 13\ns_lshl_b32 s65, {U}, 12\ns_add_u32 s64, s64, s65\ns_add_u32 s64, s64, {dst}\ns_lshl_b32 s65, {Q}, 10\ns_add_u32 s65, s65, s64")
        a(f"v_mov_b32 v9, {TAG}\nv_mov_b32 v11, {TAG}")
        self.lds_wait(flag, 4, ["ds_read2st64_b32 v[16:17], v4 offset0:0 offset1:4", "ds_read2st64_b32 v[18:19], v4 offset0:8 offset1:12",
                                "ds_read2st64_b32 v[20:21], v5 offset0:0 offset1:4", "ds_read2st64_b32 v[22:23], v5 offset0:8 offset1:12"])
        a("s_waitcnt lgkmcnt(0)\nv_pk_add_f32 v[16:17], v[16:17], v[18:19]\nv_pk_add_f32 v[20:21], v[20:21], v[22:23]\nv_add_f32 v8, v16, v17\nv_add_f32 v10, v20, v21")
        if dual: self.st2(f"buffer_store_dwordx4 v[8:11], v12, {WS}, {{so}} offen", "s65")
        else: a(f"buffer_store_dwordx4 v[8:11], v12, {WS}, s65 offen sc1")
        self.stamp(2)
        return skip
    def gather4(self, base, first_wait=None, issued=False, sleep=2, only_issue=False):
        a = self.a
        loads = [f"buffer_load_dwordx4 {vr(base+4*i)}, v1, {WS}, s52 offen offset:{i*1024} sc1" for i in range(4)]
        self.poll(loads, [base + 4 * i + k for i in range(4) for k in (1, 3)], sleep=sleep, dual="s64")
        a(f"v_add_f32 v{base}, v{base}, v{base+4}\nv_add_f32 v{base+2}, v{base+2}, v{base+6}\nv_add_f32 v{base+8}, v{base+8}, v{base+12}\nv_add_f32 v{base+10}, v{base+10}, v{base+14}")
        a(f"v_add_f32 v{base}, v{base}, v{base+8}\nv_add_f32 v{base+2}, v{base+2}, v{base+10}\nv_cvt_pk_bf16_f32 v{base}, v{base}, v{base+2}")
    def final_stage(self, outp, part, sl):
        a = self.a
        self.srd(R1, P_OUT, 4096)
        a(f"s_lshl_b32 s64, {sl}, 12\ns_add_u32 s64, s64, {outp}")
        loads = [f"buffer_load_dwordx4 {vr(32+4*i)}, v1, {WS}, s64 offen offset:{i*1024} sc1" for i in range(4)]
        a(f"s_lshr_b32 s66, {sl}, 5\ns_lshl_b32 s66, s66, 11\ns_and_b32 s65, {sl}, 31\ns_lshl_b32 s65, s65, 5\ns_add_u32 s66, s66, s65\ns_add_u32 s66, s66, {part*1024}")
        a("v_lshlrev_b32 v2, 2, v0")
        self.poll(loads, [32 + 4 * i + k for i in range(4) for k in (1, 3)], sleep=self.o.get("tailsleep", 1))
        for st in (8, 4):
            for i in range(0, st, 2): a(f"v_add_f32 v{32+i}, v{32+i}, v{32+i+st}")
        a(f"v_add_f32_dpp v32, v32, v32 row_ror:8 {DPP}\nv_add_f32_dpp v34, v34, v34 row_ror:8 {DPP}")
        for s in (32, 16):
            a(f"v_mov_b32 v33, v32\nv_mov_b32 v35, v34\nv_permlane{s}_swap_b32 v32, v33\nv_permlane{s}_swap_b32 v34, v35\nv_add_f32 v32, v32, v33\nv_add_f32 v34, v34, v35")
        a("v_cvt_pk_bf16_f32 v32, v32, v34\ns_mov_b64 exec, 0xff")
        a(f"buffer_store_dword v32, v2, {R1}, s66 offen\ns_mov_b64 exec, -1")

    def role_n(self):
        a = self.a; a.flush(); a.label("L_n")
        QL = self.QL
        REDB, REDA, QV, F1, F2, F3 = QL, QL + 4096, QL + 8192, QL + 8704, QL + 8708, QL + 8712
        F4 = QL + 8716
        PL, MX, LS, WSCR = QL + 1024, QL, QL + 25600, QL + 30720
        WB, WSTR, OSTR = 40960, 288, 1040
        VEC1, VEC2, VEC3 = 0, 8192, 16384
        T1, T2, T3 = QL + 31744, QL + 31748, QL + 31752
        a(f"s_and_b32 {H}, s2, 7\ns_lshl_b32 {H}, {H}, 2\ns_bfe_u32 s64, s2, 0x20003\ns_add_u32 {H}, {H}, s64\ns_lshr_b32 {Q}, s2, 5\ns_and_b32 {U}, s3, 3\nv_lshlrev_b32 v1, 4, v0")
        a("s_lshr_b32 s64, s3, 2\ns_cmp_eq_u32 s64, 1\ns_cbranch_scc1 L_g1\ns_cmp_eq_u32 s64, 2\ns_cbranch_scc1 L_g2\ns_cmp_eq_u32 s64, 3\ns_cbranch_scc1 L_g3")
        if self.o.get("prio", 1): a("s_setprio 3")
        a(f"v_mov_b32 v6, {F1}\nv_mov_b32 v8, 0\nv_mov_b32 v9, 0\nv_mov_b32 v10, 0\nv_mov_b32 v11, 0\nds_write_b128 v6, v[8:11]")
        skip = self.front_q(P_BX, P_BWQ, REDB, F1, QBP, True)
        a("s_branch L_qpoll")
        a.label(skip)
        a(f"s_and_b32 s66, {U}, 1\ns_lshl_b32 s64, {H}, 13\ns_lshl_b32 s65, s66, 12\ns_add_u32 s64, s64, s65\ns_add_u32 s64, s64, {QBP}")
        a(f"s_lshl_b32 s65, s66, 8\ns_add_u32 s65, s65, {QV}\nv_lshlrev_b32 v4, 2, v0\nv_add_u32 v4, s65, v4")
        self.gather4(16, sleep=self.o.get("qbsleep", 1))
        a("ds_write_b32 v4, v16")
        self.lds_signal(F2)
        self.stamp(3)
        a("s_branch L_qpoll")
        a.flush(); a.label("L_g1")
        if self.o.get("prio", 1): a("s_setprio 2")
        a("v_bfe_u32 v4, v0, 2, 2\nv_lshlrev_b32 v4, 16, v4\nv_lshrrev_b32 v3, 4, v0\nv_lshl_add_u32 v4, v3, 6, v4\nv_and_b32 v2, 3, v0\nv_lshl_add_u32 v4, v2, 4, v4")
        a(f"s_lshl_b32 s60, {Q}, 2\ns_add_u32 s60, s60, {U}\ns_lshl_b32 s65, s60, 12\ns_lshl_b32 s60, s60, 18\ns_lshl_b32 s64, {H}, 8\ns_add_u32 s60, s60, s64")
        a("s_waitcnt lgkmcnt(0)")
        self.epoch()
        self.srd(R1, P_UK, 4 << 20); self.srd(WS, P_WS, WS_BYTES)
        for i in range(8): a(f"s_add_u32 s64, s60, {i*8192}\nbuffer_load_dwordx4 {vr(64+4*i)}, v4, {R1}, s64 offen nt")
        self.tag_ready()
        a("s_barrier")
        a(f"v_bfe_u32 v5, v0, 2, 1\nv_lshlrev_b32 v4, 8, v5\nv_lshl_add_u32 v4, v3, 6, v4\nv_lshl_add_u32 v4, v2, 4, v4\nv_add_u32 v4, {QV}, v4")
        a("v_lshlrev_b32 v5, 16, v5\nv_lshl_add_u32 v5, v3, 10, v5\nv_and_b32 v2, 1, v0\nv_lshl_add_u32 v5, v2, 4, v5\nv_cmp_eq_u32 s[66:67], 1, v2")
        a(f"s_lshl_b32 s64, {H}, 5\ns_add_u32 s65, s65, s64\ns_add_u32 s65, s65, {QABS}")
        a(f"v_mov_b32 v25, {TAG}\nv_mov_b32 v27, {TAG}\ns_waitcnt vmcnt(0)")
        self.stamp(1)
        self.lds_wait(F2, 2, ["ds_read_b128 v[8:11], v4"])
        a("s_waitcnt lgkmcnt(0)")
        for i in range(8): a(f"v_mfma_f32_16x16x32_bf16 {vr(64+4*i)}, {vr(64+4*i)}, v[8:11], 0")
        for g in range(2): self.diag_sum([(64 + 4 * i, 12 + i) for i in range(4*g, 4*g+4)])
        for i in range(4): a(f"v_cvt_pk_bf16_f32 v{20+i}, v{12+2*i}, v{13+2*i}")
        a("v_cndmask_b32 v24, v20, v22, s[66:67]\nv_cndmask_b32 v26, v21, v23, s[66:67]")
        a(f"s_mov_b32 exec_lo, 0x00330033\ns_mov_b32 exec_hi, 0x00330033\nbuffer_store_dwordx4 v[24:27], v5, {WS}, s65 offen sc1\ns_mov_b64 exec, -1")
        self.stamp(3)
        a.flush(); a.label("L_qpoll")
        self.srd(R3, P_WO, 4 << 20)
        a("v_mov_b32 v14, 0")
        a(f"s_lshr_b32 s64, s2, 6\ns_lshl_b32 s64, s64, 16\ns_lshl_b32 s65, s3, 13\ns_add_u32 s64, s64, s65\ns_add_u32 s64, s64, {QABS}\ns_add_u32 s65, s64, 4096")
        loads = [f"buffer_load_dwordx4 {vr(32+4*q)}, v1, {WS}, s{64+(q>>2)} offen offset:{(q&3)*1024} sc1" for q in range(8)]
        self.lds_wait(F4, 4)
        self.poll(loads, [32 + 4 * q + k for q in range(8) for k in (1, 3)], sleep=4)
        a(f"s_lshl_b32 s65, s3, 12\ns_add_u32 s65, s65, {QL}\nv_lshlrev_b32 v8, 3, v0\nv_add_u32 v8, s65, v8\nv_add_u32 v9, 1024, v8\nv_add_u32 v10, 2048, v8\nv_add_u32 v11, 3072, v8")
        self.stamp(4)
        a("s_waitcnt lgkmcnt(0)\ns_barrier")
        for q in range(8): a(f"ds_write2_b32 v{8+(q>>1)}, v{32+4*q}, v{34+4*q} offset0:{(q&1)*128} offset1:{(q&1)*128+1}")
        a("s_waitcnt lgkmcnt(0)\ns_branch L_b1")
        a.flush(); a.label("L_g2")
        skip = self.front_q(P_AX, P_WQ, REDA, F3, QAP, False)
        a.label(skip)
        self.srd(R3, P_WO, 4 << 20); self.srd(R1, P_UV, 4 << 20); self.srd(R2, P_BWO, 4 << 20)
        a(f"s_lshl_b32 s67, {H}, 17\ns_lshl_b32 s64, {U}, 15\ns_add_u32 s67, s67, s64\ns_lshl_b32 s64, {Q}, 8\ns_add_u32 s67, s67, s64\ns_add_u32 s70, s67, 4096")
        a("v_lshlrev_b32 v14, 13, v3\nv_lshl_add_u32 v14, v2, 4, v14\nv_lshlrev_b32 v13, 16, v3\nv_lshl_add_u32 v13, v2, 4, v13")
        def wload(srd, base):
            if self.o.get("now"): return
            for e in range(8): a(f"buffer_load_dwordx4 {vr(base+4*e)}, v14, {srd}, {'s67' if e<4 else 's70'} offen offset:{(e&3)*1024} nt")
        self.lds_wait(F4, 4, sleep=4)
        def uvload():
            for e in range(8): a(f"s_add_u32 s64, s60, {e*8192}\nbuffer_load_dwordx4 {vr(64+4*e)}, v13, {R1}, s64 offen nt")
        if self.o.get("wolate", 0) < 2: uvload()
        if not self.o.get("wolate"): wload(R2, 96)
        self.stamp(4)
        a("s_waitcnt lgkmcnt(0)\ns_barrier")
        if self.o.get("wolate"):
            a("s_barrier\ns_barrier")
            if self.o.get("wolate", 0) == 2: uvload()
            wload(R2, 96)
            a("s_branch L_pv")
        a.flush(); a.label("L_b1")
        a("s_barrier\ns_barrier\ns_setprio 0")
        self.prefetch("pf1")
        a("s_branch L_pv")
        a.flush(); a.label("L_g3")
        a(f"s_lshl_b32 s60, s2, 17\ns_lshl_b32 s66, {U}, 10\ns_add_u32 s60, s60, s66\ns_lshl_b32 s64, {U}, 6\nv_xor_b32 v8, s64, v1\nv_xor_b32 v9, 16, v8\nv_xor_b32 v10, 32, v8\nv_xor_b32 v11, 48, v8\nv_mov_b32 v14, 0")
        a("s_waitcnt lgkmcnt(0)")
        self.epoch()
        self.srd(R1, P_C, 16 << 20); self.srd(WS, P_WS, WS_BYTES); self.srd(R3, P_WO, 4 << 20)
        a("s_barrier")
        cd = self.o.get("cdepth", 0)
        for i in range(32):
            a(f"s_add_u32 m0, s66, {i*4096}\ns_add_u32 s64, s60, {i*4096}\nbuffer_load_dwordx4 v{8+(i&3)}, {R1}, s64 offen nt lds")
            if i == 31 - self.o.get("qearly", 0): self.lds_signal(F4)
            if cd and i + 1 >= cd and i < 31: a(f"s_waitcnt vmcnt({cd-1})")
        self.tag_ready()
        a(f"s_lshl_b32 s66, {U}, 15")
        a("v_and_b32 v2, 31, v0\nv_lshrrev_b32 v3, 5, v0\nv_and_b32 v4, 3, v0\nv_lshlrev_b32 v4, 2, v4\nv_bfe_u32 v5, v0, 2, 2\nv_or_b32 v4, v4, v5\nv_xor_b32 v4, v4, v3")
        a("v_lshlrev_b32 v4, 4, v4\nv_lshl_add_u32 v4, v2, 10, v4\nv_add_u32 v96, s66, v4")
        for jj in range(1, 8): a(f"v_xor_b32 v{96+jj}, {jj*32}, v96")
        a(f"v_add_u32 v104, {QL}, v1")
        a("s_waitcnt vmcnt(0)")
        self.stamp(1)
        a("s_barrier\ns_barrier")
        self.stamp(5)
        NF = 7
        def rd(j):
            b = 32 + 8 * (j % 8)
            a(f"ds_read_b128 {vr(b)}, v{96+(j&7)} offset:{(j>>3)*256}\nds_read_b128 {vr(b+4)}, v104 offset:{j*1024}")
        for j in range(NF): rd(j)
        for j in range(32):
            b = 32 + 8 * (j % 8)
            a(f"s_waitcnt lgkmcnt({2*min(NF-1, 31-j)})")
            if j == 0: a("s_barrier")
            a(f"v_mfma_f32_32x32x16_bf16 v[16:31], {vr(b)}, {vr(b+4)}, {'0' if j==0 else 'v[16:31]'}")
            if j + NF < 32: rd(j + NF)
        a(f"v_lshlrev_b32 v6, 4, v2\nv_add_u32 v6, {QL}, v6\ns_lshl_b32 s64, {U}, 2\nv_add_u32 v7, s64, v6")
        a(f"v_lshlrev_b32 v4, 5, v2\nv_add_u32 v4, {MX}, v4\ns_lshl_b32 s64, {U}, 3\nv_add_u32 v5, s64, v4")
        a("v_max3_f32 v8, v16, v17, v18")
        for i in range(19, 31, 2): a(f"v_max3_f32 v8, v8, v{i}, v{i+1}")
        a("v_max_f32 v8, v8, v31")
        self.xreduce("v_max_f32", 8, 9, steps=(32,))
        a(f"v_mov_b32 v9, {TAG}\nds_write_b64 v5, v[8:9]\ns_lshl_b32 s64, {U}, 11\ns_add_u32 s64, s64, {PL-QL}\nv_add_u32 v104, s64, v104\ns_mov_b32 {CNT}, {SPIN*50}")
        L, OK = a.newlabel("L_mx"), a.newlabel("L_mxok")
        a.label(L)
        a("ds_read_b128 v[32:35], v4\nds_read_b128 v[36:39], v4 offset:16\ns_waitcnt lgkmcnt(0)")
        a(f"v_cmp_ne_u32 vcc, {TAG}, v33")
        for t in (35, 37, 39): a(f"v_cmp_ne_u32 s[62:63], {TAG}, v{t}\ns_or_b64 vcc, vcc, s[62:63]")
        a(f"s_cbranch_scc0 {OK}\ns_sleep 1\ns_sub_u32 {CNT}, {CNT}, 1\ns_cmp_lg_u32 {CNT}, 0\ns_cbranch_scc1 {L}")
        a.label(OK)
        a(f"v_max3_f32 v8, v32, v34, v36\nv_max_f32 v8, v8, v38\nv_mul_f32 v15, {SC}, v8")
        for gg in range(2):
            for i in range(8): a(f"v_fma_f32 v{16+8*gg+i}, v{16+8*gg+i}, {SC}, -v15")
            for i in range(8): a(f"v_exp_f32 v{16+8*gg+i}, v{16+8*gg+i}")
            for i in range(4): a(f"v_cvt_pk_bf16_f32 v{32+4*gg+i}, v{16+8*gg+2*i}, v{17+8*gg+2*i}")
            a(f"ds_write_b128 v104, {vr(32+4*gg)} offset:{gg*1024}")
        for st in (8, 4, 2):
            for i in range(0, st, 2): a(f"v_pk_add_f32 {vr(16+i,2)}, {vr(16+i,2)}, {vr(16+i+st,2)}")
        a("v_add_f32 v8, v16, v17")
        self.xreduce("v_add_f32", 8, 9, steps=(32,))
        a(f"ds_write_b32 v7, v8 offset:{LS-QL}")
        a.flush(); a.label("L_pv")
        a("s_nop 1")
        a("v_bfe_u32 v21, v0, 2, 2\nv_lshrrev_b32 v22, 5, v0")
        a("v_lshl_add_u32 v23, v22, 2, v21\nv_lshlrev_b32 v23, 10, v23")
        a("v_lshl_or_b32 v24, v21, 2, v22")
        a("v_bfe_u32 v25, v0, 4, 1\nv_bfe_u32 v26, v0, 1, 1\nv_lshl_or_b32 v25, v25, 1, v26\ns_lshl_b32 s64, s3, 2\nv_or_b32 v25, s64, v25")
        a("v_xor_b32 v25, v25, v24\nv_lshl_add_u32 v8, v25, 4, v23\nv_and_b32 v26, 1, v0\nv_lshl_add_u32 v8, v26, 3, v8")
        a(f"v_xor_b32 v9, 32, v8\nv_add_u32 v9, 8192, v9\nv_add_u32 v10, 0x10000, v8\nv_add_u32 v11, 0x10000, v9\nv_add_u32 v12, {PL}, v1")
        a("s_waitcnt lgkmcnt(0)\ns_barrier")
        self.stamp(6)
        def rdp(T):
            b = 32 + 8 * (T % 4)
            a(f"ds_read_b64_tr_b16 {vr(b,2)}, v{8+2*(T>>2)} offset:{(T&3)*16384}")
            a(f"ds_read_b64_tr_b16 {vr(b+2,2)}, v{9+2*(T>>2)} offset:{(T&3)*16384}")
            a(f"ds_read_b128 {vr(b+4)}, v12 offset:{T*1024}")
        for T in range(4): rdp(T)
        for T in range(8):
            b = 32 + 8 * (T % 4)
            a(f"s_waitcnt lgkmcnt({3*min(3,7-T)})")
            a(f"v_mfma_f32_32x32x16_bf16 v[16:31], {vr(b)}, {vr(b+4)}, {'0' if T==0 else 'v[16:31]'}")
            if T + 4 < 8: rdp(T + 4)
        a(f"v_and_b32 v4, 31, v0\nv_mul_u32_u24 v4, {OSTR}, v4\nv_lshrrev_b32 v5, 5, v0\nv_lshl_add_u32 v4, v5, 3, v4\ns_lshl_b32 s64, s3, 6\nv_add_u32 v4, s64, v4")
        a(f"s_mul_i32 s64, s3, {2*OSTR}\nv_add_u32 v5, s64, v1")
        LSTR = self.o.get("lstr", 33024)
        a(f"v_lshrrev_b32 v3, 4, v0\nv_and_b32 v2, 15, v0\nv_mul_u32_u24 v6, {LSTR}, v3\nv_lshl_add_u32 v6, v2, 4, v6")
        a(f"s_mul_i32 s64, s3, {8*LSTR}\ns_lshl_b32 s65, s2, 8\ns_add_u32 s64, s64, s65\ns_add_u32 s64, s64, {LAT}\ns_add_u32 s65, s64, {4*LSTR}")
        a("s_barrier")
        for q in range(4):
            a(f"v_cvt_pk_bf16_f32 v{32+2*q}, v{16+4*q}, v{17+4*q}\nv_cvt_pk_bf16_f32 v{33+2*q}, v{18+4*q}, v{19+4*q}")
            a(f"ds_write_b64 v4, {vr(32+2*q,2)} offset:{q*16}")
        a("s_waitcnt lgkmcnt(0)\ns_barrier")
        self.stamp(7)
        a(f"ds_read_b128 v[32:35], v5\nds_read_b128 v[36:39], v5 offset:{OSTR}")
        a(f"v_and_b32 v7, 31, v0\nv_lshlrev_b32 v8, 4, v7\nv_add_u32 v8, {LS}, v8\nds_read_b128 v[40:43], v8")
        if self.o.get("nolat"): a("s_mov_b64 exec, 1")
        a(f"s_waitcnt lgkmcnt(2)\nbuffer_store_dwordx4 v[32:35], v6, {WS}, s64 offen sc1\ns_waitcnt lgkmcnt(1)\nbuffer_store_dwordx4 v[36:39], v6, {WS}, s65 offen sc1")
        if self.o.get("nolat"): a("s_mov_b64 exec, -1")
        skip = a.newlabel("L_skipw")
        a(f"s_lshr_b32 s66, s3, 2\ns_mul_i32 s66, s66, {128*WSTR}\ns_add_u32 s66, s66, {WB}")
        a(f"v_mul_u32_u24 v30, {8*WSTR}, v3\nv_lshl_add_u32 v30, v2, 4, v30\ns_mul_i32 s64, {U}, {32*WSTR}\ns_add_u32 s64, s64, s66\nv_add_u32 v30, s64, v30")
        a(f"s_lshr_b32 s64, s3, 2\ns_cmp_lg_u32 s64, 2\ns_cbranch_scc1 {skip}")
        a(f"v_subrev_u32 v29, {2*128*WSTR}, v30\ns_waitcnt vmcnt(2)")
        def wbounce():
            for e in range(8): a(f"ds_write_b128 v30, {vr(96+4*e)} offset:{e*WSTR}")
        for e in range(8): a(f"ds_write_b128 v29, {vr(64+4*e)} offset:{e*WSTR}")
        for e in range(8): a(f"ds_write_b128 v29, {vr(96+4*e)} offset:{128*WSTR+e*WSTR}")
        a.label(skip)
        a(f"s_waitcnt lgkmcnt(0)\nv_pk_add_f32 v[40:41], v[40:41], v[42:43]\nv_mov_b32 v44, v15\nv_mov_b32 v45, {TAG}\nv_mov_b32 v47, {TAG}\nv_add_f32 v46, v40, v41")
        a(f"v_lshlrev_b32 v7, 11, v7\ns_lshl_b32 s64, s2, 4\ns_add_u32 s64, s64, {MLB}")
        a("s_waitcnt vmcnt(0)\ns_barrier")
        skip = a.newlabel("L_skipml")
        a(f"s_cmp_lg_u32 s3, 12\ns_cbranch_scc1 {skip}")
        a(f"s_mov_b32 exec_hi, 0\nbuffer_store_dwordx4 v[44:47], v7, {WS}, s64 offen sc1\ns_mov_b64 exec, -1")
        a.label(skip)
        self.stamp(8)
        skip = a.newlabel("L_skipw")
        a(f"v_bfe_u32 v31, v0, 2, 2\nv_lshl_add_u32 v31, v3, 3, v31\nv_mul_u32_u24 v31, {WSTR}, v31\nv_and_b32 v10, 3, v0\nv_lshl_add_u32 v31, v10, 3, v31\ns_lshl_b32 s64, {U}, 6\ns_add_u32 s64, s64, s66\nv_add_u32 v31, s64, v31")
        def wfrags():
            for ct in range(2):
                for ks in range(4):
                    for t in range(2):
                        a(f"ds_read_b64_tr_b16 {vr(96+(ct*4+ks)*4+2*t,2)}, v31 offset:{(32*ks+4*t)*WSTR+32*ct}")
        skip2 = a.newlabel("L_skipw")
        a(f"s_cmp_ge_u32 s3, 8\ns_cbranch_scc1 {skip2}")
        wfrags()
        a(f"s_branch {skip}")
        a.label(skip2)
        a(f"s_cmp_ge_u32 s3, 12\ns_cbranch_scc1 {skip}")
        wload(R3, 96)
        a.label(skip)
        a(f"v_mov_b32 v48, {T1}\nv_mov_b32 v52, 0\nv_mov_b32 v53, 0\nv_mov_b32 v54, 0\nv_mov_b32 v55, 0\nds_write_b128 v48, v[52:55]")
        a(f"s_lshr_b32 s65, s3, 3\ns_lshl_b32 s65, s65, 10\ns_lshl_b32 s64, {H}, 11\ns_add_u32 s64, s64, s65\ns_add_u32 s64, s64, {MLB}")
        a(f"s_lshl_b32 s65, {H}, 2\ns_add_u32 s65, s65, {Q}\ns_mul_i32 s65, s65, {LSTR}\ns_lshl_b32 s66, s3, 11\ns_add_u32 s65, s65, s66\ns_add_u32 s65, s65, {LAT}")
        a("s_and_b32 s66, s3, 7\ns_lshl_b32 s66, s66, 5\nv_lshlrev_b32 v4, 2, v3\nv_add_u32 v4, s66, v4")
        a("s_mul_i32 s66, s3, 272\nv_lshlrev_b32 v5, 4, v2\nv_lshl_add_u32 v5, v3, 2, v5\nv_add_u32 v5, s66, v5")
        a("v_mul_u32_u24 v6, 272, v2\nv_lshl_add_u32 v3, v3, 4, v6")
        a(f"v_mov_b32 v29, {TAG}")
        self.poll([f"buffer_load_dwordx4 v[8:11], v1, {WS}, s64 offen sc1"], [9, 11], sleep=self.o.get("mlsleep", 4))
        if self.o.get("nolat"): a("s_mov_b32 s65, 0x8000")
        for i in range(2): a(f"buffer_load_dwordx4 {vr(32+4*i)}, v1, {WS}, s65 offen offset:{i*1024} sc1")
        self.stamp(9)
        self.dpp_reduce("v_max_f32", 12, 8, 4); self.xreduce("v_max_f32", 12, 15)
        a("v_sub_f32 v13, v8, v12\nv_exp_f32 v13, v13\nv_mul_f32 v14, v13, v10")
        self.dpp_reduce("v_add_f32", 14, 14, 4); self.xreduce("v_add_f32", 14, 15)
        a("v_rcp_f32 v14, v14\nv_mul_f32 v13, v13, v14")
        a("ds_bpermute_b32 v8, v4, v13\nds_bpermute_b32 v9, v4, v13 offset:16\ns_waitcnt lgkmcnt(0)")
        for i in range(2):
            a(f"s_waitcnt vmcnt({1-i})")
            for d in range(4):
                a(f"v_lshlrev_b32 v24, 16, v{32+4*i+d}\nv_and_b32 v25, 0xffff0000, v{32+4*i+d}")
                if i == 0: a(f"v_mul_f32 v{16+2*d}, v8, v24\nv_mul_f32 v{17+2*d}, v8, v25")
                else: a(f"v_fmac_f32 v{16+2*d}, v9, v24\nv_fmac_f32 v{17+2*d}, v9, v25")
        for e in range(4): a(f"v_permlane32_swap_b32 v{16+e}, v{20+e}")
        for e in range(4): a(f"v_add_f32 v{16+e}, v{16+e}, v{20+e}")
        for e in range(2): a(f"v_permlane16_swap_b32 v{16+e}, v{18+e}")
        for e in range(2): a(f"v_add_f32 v{16+e}, v{16+e}, v{18+e}")
        a(f"v_cvt_pk_bf16_f32 v16, v16, v17\nds_write_b32 v5, v16 offset:{VEC1}")
        a("v_lshrrev_b32 v7, 5, v0\nv_lshlrev_b32 v6, 12, v7\nv_and_b32 v8, 31, v0\nv_lshl_add_u32 v6, v8, 3, v6")
        a("v_lshlrev_b32 v7, 17, v7\nv_bfe_u32 v8, v0, 4, 1\nv_lshl_add_u32 v7, v8, 12, v7\nv_lshl_add_u32 v7, v2, 3, v7")
        a(f"s_lshl_b32 s67, {Q}, 2\ns_add_u32 s67, s67, {U}\ns_lshl_b32 s67, s67, 6\ns_add_u32 s67, s67, {H}\ns_lshl_b32 s67, s67, 7")
        a(f"s_lshl_b32 s60, {H}, 13")
        a("s_waitcnt lgkmcnt(0)\ns_barrier")
        end = a.newlabel("L_nend")
        a("s_lshr_b32 s64, s3, 2\ns_cmp_eq_u32 s64, 1\ns_cbranch_scc1 L_t1\ns_cmp_eq_u32 s64, 2\ns_cbranch_scc1 L_t2\ns_cmp_eq_u32 s64, 3\ns_cbranch_scc1 L_t3")
        a(f"s_lshl_b32 s64, {Q}, 10\ns_add_u32 s64, s64, s60\ns_lshl_b32 s65, {U}, 8\ns_add_u32 s64, s64, s65\ns_add_u32 s64, s64, {CTXP}")
        self.proj(VEC1, False, True)
        self.st2(f"buffer_store_dwordx2 v[28:29], v6, {WS}, {{so}} offen", "s64")
        self.stamp(10)
        a(f"s_branch {end}")
        a.flush(); a.label("L_t1")
        a(f"s_lshl_b32 s64, {U}, 11\ns_add_u32 s64, s64, s60\ns_add_u32 s64, s64, {CTXP}")
        a(f"s_lshr_b32 s65, {U}, 1\ns_lshl_b32 s65, s65, 2\ns_and_b32 s66, {U}, 1\ns_add_u32 s65, s65, s66\ns_mul_i32 s65, s65, 544\nv_lshlrev_b32 v5, 2, v0\nv_add_u32 v5, s65, v5")
        self.poll([f"buffer_load_dwordx4 {vr(8+4*i)}, v1, {WS}, s52 offen offset:{i*1024} sc1" for i in range(2)], [9, 11, 13, 15], sleep=self.o.get("tailsleep", 1), dual="s64")
        a(f"v_cvt_pk_bf16_f32 v8, v8, v10\nv_cvt_pk_bf16_f32 v12, v12, v14\nds_write_b32 v5, v8 offset:{VEC2}\nds_write_b32 v5, v12 offset:{VEC2+272}")
        self.lds_signal(T1, 48, 49)
        self.stamp(10)
        self.proj(VEC2, False, False, flag=T1)
        a(f"s_add_u32 s64, s67, {OUTP_B}\nbuffer_store_dwordx2 v[28:29], v7, {WS}, s64 offen sc1")
        self.stamp(11)
        a(f"s_branch {end}")
        a.flush(); a.label("L_t2")
        wbounce()
        self.lds_signal(T2, 48, 49)
        self.lds_wait(T2, 4, ta=48, tb=49)
        wfrags()
        a(f"v_lshlrev_b32 v4, 4, v2\ns_lshl_b32 s64, {H}, 8\ns_add_u32 s64, s64, {MLA}")
        self.poll([f"buffer_load_dwordx4 v[8:11], v4, {WS}, s64 offen sc1"], [9, 11], sleep=8)
        self.dpp_reduce("v_max_f32", 12, 8, 3)
        a("v_sub_f32 v13, v8, v12\nv_exp_f32 v13, v13\nv_mul_f32 v14, v13, v10")
        self.dpp_reduce("v_add_f32", 14, 14, 3)
        a("v_rcp_f32 v14, v14\nv_mul_f32 v13, v13, v14")
        a(f"s_lshl_b32 s64, {U}, 6\ns_add_u32 s64, s64, {WSCR}\nv_lshlrev_b32 v4, 2, v2\nv_add_u32 v4, s64, v4\nds_write_b32 v4, v13")
        a("v_lshrrev_b32 v4, 4, v0\nv_lshlrev_b32 v4, 4, v4\nv_add_u32 v4, s64, v4\nds_read_b128 v[24:27], v4")
        a(f"s_lshl_b32 s64, {U}, 11\ns_add_u32 s64, s64, s60\ns_add_u32 s64, s64, {OPART}")
        a(f"s_mul_i32 s65, {U}, {4*272}\ns_add_u32 s65, s65, {VEC3}\nv_lshrrev_b32 v5, 5, v0\nv_mul_u32_u24 v5, 272, v5\nv_and_b32 v4, 31, v0\nv_lshl_add_u32 v5, v4, 3, v5\nv_add_u32 v5, s65, v5")
        a(f"s_add_u32 s67, s67, {OUTP_A}\nv_mov_b32 v48, {T3}\nv_mov_b32 v50, 1\ns_waitcnt lgkmcnt(0)")
        self.stamp(10)
        self.poll([f"buffer_load_dwordx4 {vr(8+4*i)}, v1, {WS}, s52 offen offset:{i*1024} sc1" for i in range(2)], [9, 11, 13, 15], sleep=self.o.get("tailsleep", 1), dual="s64")
        a("ds_write2_b32 v5, v8, v10 offset0:0 offset1:1\nds_write2_b32 v5, v12, v14 offset0:136 offset1:137")
        a("s_mov_b64 exec, 1\nds_add_u32 v48, v50\ns_mov_b64 exec, -1")
        self.stamp(11)
        self.proj(VEC3, True, True, flag=T3)
        a(f"buffer_store_dwordx2 v[28:29], v7, {WS}, s67 offen sc1")
        self.stamp(12)
        a(f"s_branch {end}")
        a.flush(); a.label("L_t3")
        fa = a.newlabel("L_fa")
        a(f"s_cmp_lg_u32 s3, 12\ns_cbranch_scc1 {end}\ns_cmp_lt_u32 s2, 64\ns_cbranch_scc1 {fa}\ns_sub_u32 s60, s2, 64")
        self.final_stage(OUTP_B, 1, "s60")
        self.stamp(11)
        a(f"s_branch {end}")
        a.label(fa)
        self.final_stage(OUTP_A, 0, "s2")
        self.stamp(12)
        a(f"s_cmp_lg_u32 s2, 0\ns_cbranch_scc1 {end}")
        a(f"s_mov_b64 exec, 1\nv_mov_b32 v3, {TAG}\nv_mov_b32 v4, 0\nbuffer_store_dword v3, v4, {WS}, 0 offen offset:{EPOCH} sc1\ns_mov_b64 exec, -1")
        a.label(end)
        self.finish()

    def role_aatt(self):
        a = self.a; a.flush(); a.label("L_aatt")
        MX, LS, FQ, FM, FL, QP, RED = 0, 256, 512, 516, 520, 1024, 10240
        G, M = "s61", "s68"
        a(f"s_and_b32 {G}, s2, 7\ns_bfe_u32 {M}, s2, 0x40003")
        a("v_bfe_u32 v3, v0, 2, 2\nv_lshlrev_b32 v2, 8, v3\nv_lshrrev_b32 v4, 4, v0\nv_lshl_add_u32 v2, v4, 6, v2\nv_and_b32 v5, 3, v0\nv_lshl_add_u32 v2, v5, 4, v2\nv_lshlrev_b32 v1, 4, v0")
        a(f"s_lshr_b32 s64, {M}, 3\ns_lshl_b32 s60, s64, 3\ns_add_u32 s60, s60, {G}\ns_lshl_b32 s60, s60, 3\ns_and_b32 s65, {M}, 7\ns_add_u32 s60, s60, s65\ns_lshl_b32 s60, s60, 18\ns_lshl_b32 s65, s3, 10\ns_add_u32 s60, s60, s65")
        a(f"v_mov_b32 v12, {FQ}\nv_mov_b32 v8, 0\nv_mov_b32 v9, 0\nv_mov_b32 v10, 0\nv_mov_b32 v11, 0\nds_write_b128 v12, v[8:11]")
        n1, d1, d = self.o.get("kn1", 8), self.o.get("kd1", 1), self.o.get("kd2", 3)
        qat = self.o.get("qat", 9)
        assert n1 <= qat and qat + d + 2 <= 15 and d <= 4
        def ld(n):
            dd = d1 if n <= n1 else d
            if n > 0: a(f"s_waitcnt vmcnt({dd-1})")
            if n < 16: reg, vo, srd, i = 64 + 4 * n, "v2", R1, n
            else: reg, vo, srd, i = 32 + 4 * (n - 16), "v1", R2, n - 16
            a(f"s_add_u32 s65, s60, {i*16384}\nbuffer_load_dwordx4 {vr(reg)}, {vo}, {srd}, s65 offen nt")
        a("s_waitcnt lgkmcnt(0)")
        self.epoch()
        self.srd(R1, P_K, 32 << 20); self.srd(R2, P_V, 32 << 20); self.srd(WS, P_WS, WS_BYTES)
        qload = f"buffer_load_dwordx4 v[8:11], v1, {WS}, s64 offen sc1"
        def sgroup(gs):
            for g in gs:
                for i in range(4*g, 4*g+4): a(f"v_mfma_f32_16x16x32_bf16 {vr(64+4*i)}, {vr(64+4*i)}, v[8:11], 0")
            for g in gs: self.diag_sum([(64 + 4 * i, 16 + i) for i in range(4*g, 4*g+4)])
        def w_setup():
            a("s_barrier")
            a(f"s_lshl_b32 s66, {G}, 2\ns_lshr_b32 s67, s3, 2\ns_add_u32 s66, s66, s67\ns_lshl_b32 s66, s66, 13\ns_lshl_b32 s64, s64, 12\ns_add_u32 s64, s64, s66\ns_and_b32 s66, s3, 3\ns_lshl_b32 s69, s66, 10\ns_add_u32 s64, s64, s69\ns_add_u32 s64, s64, {QAP}")
            self.tag_ready()
            for v in range(4):
                a(f"s_mov_b32 s{44+2*v}, {hex(0x11111111<<v)}\ns_mov_b32 s{45+2*v}, {hex(0x11111111<<v)}")
            a(f"s_lshl_b32 s66, s66, 11\ns_lshl_b32 s67, s67, 9\ns_add_u32 s66, s66, s67\ns_add_u32 s66, s66, {QP}\nv_lshlrev_b32 v6, 3, v0\nv_add_u32 v6, s66, v6\nv_lshlrev_b32 v7, 1, v2")
        def w_qcheck():
            self.poll([qload], [9, 11], first_wait=d, issued=True, sleep=8)
            a("ds_write2_b32 v6, v8, v10 offset0:0 offset1:1")
            self.lds_signal(FQ, 12, 13)
            self.stamp(1)
        def w_qread():
            self.lds_wait(FQ, 16, [f"ds_read_b128 {vr(32+8*q+4*t)}, v7 offset:{QP+q*2048+t*16}" for q in range(4) for t in range(2)], 12, 13)
            a("s_waitcnt lgkmcnt(0)")
            for st in (16, 8):
                for i in range(0, st, 2): a(f"v_pk_add_f32 {vr(32+i,2)}, {vr(32+i,2)}, {vr(32+i+st,2)}")
            for i in range(4): a(f"v_cvt_pk_bf16_f32 v{8+i}, v{32+2*i}, v{33+2*i}")
            a("v_lshlrev_b32 v6, 6, v3\ns_lshl_b32 s64, s3, 2\nv_add_u32 v7, s64, v6")
        def w_max():
            sgroup([3])
            a("v_max3_f32 v8, v16, v17, v18")
            for i in range(19, 31, 2): a(f"v_max3_f32 v8, v8, v{i}, v{i+1}")
            a("v_max_f32 v8, v8, v31")
            self.xreduce("v_max_f32", 8, 9)
            a(f"ds_write_b32 v7, v8 offset:{MX}")
            self.lds_signal(FM, 12, 13)
            self.stamp(2)
        def w_exp():
            self.lds_wait(FM, 16, [f"ds_read_b128 {vr(96+4*q)}, v6 offset:{MX+16*q}" for q in range(4)], 12, 13)
            a("s_waitcnt lgkmcnt(0)\nv_max3_f32 v8, v96, v97, v98")
            for i in range(99, 111, 2): a(f"v_max3_f32 v8, v8, v{i}, v{i+1}")
            a(f"v_max_f32 v8, v8, v111\nv_mul_f32 v4, {SC}, v8")
            for i in range(16): a(f"v_fma_f32 v{16+i}, v{16+i}, {SC}, -v4")
        def w_exp2():
            for i in range(16): a(f"v_exp_f32 v{16+i}, v{16+i}")
            for i in range(8): a(f"v_cvt_pk_bf16_f32 v{8+i}, v{16+2*i}, v{17+2*i}")
        def w_sum():
            for st in (8, 4, 2):
                for i in range(0, st, 2): a(f"v_pk_add_f32 {vr(16+i,2)}, {vr(16+i,2)}, {vr(16+i+st,2)}")
            a("v_add_f32 v16, v16, v17")
            self.xreduce("v_add_f32", 16, 17)
            a(f"ds_write_b32 v7, v16 offset:{LS}")
            self.lds_signal(FL, 18, 19)
        def w_mask():
            for blk in range(2):
                for v in range(4):
                    for t in range(4): a(f"v_cndmask_b32 v{96+16*blk+4*v+t}, 0, v{8+4*blk+t}, s[{44+2*v}:{45+2*v}]")
            self.stamp(3)
        def w_ml():
            skip = a.newlabel("L_skipml")
            a(f"s_cmp_lg_u32 s3, 0\ns_cbranch_scc1 {skip}")
            self.lds_wait(FL, 16, [f"ds_read_b128 {vr(16+4*q)}, v6 offset:{LS+16*q}" for q in range(4)], 12, 13)
            a(f"s_lshl_b32 s64, {G}, 10\ns_lshl_b32 s66, {M}, 4\ns_add_u32 s64, s64, s66\ns_add_u32 s64, s64, {MLA}")
            a("v_lshlrev_b32 v5, 8, v3\ns_waitcnt lgkmcnt(0)")
            for st in (8, 4, 2):
                for i in range(0, st, 2): a(f"v_pk_add_f32 {vr(16+i,2)}, {vr(16+i,2)}, {vr(16+i+st,2)}")
            a(f"v_add_f32 v22, v16, v17\nv_mov_b32 v20, v4\nv_mov_b32 v21, {TAG}\nv_mov_b32 v23, {TAG}")
            a(f"s_mov_b64 exec, 0x1111\nbuffer_store_dwordx4 v[20:23], v5, {WS}, s64 offen sc1\ns_mov_b64 exec, -1\ns_nop 1")
            a.label(skip)
            a(f"v_lshlrev_b32 v5, 5, v0\ns_lshl_b32 s64, s3, 11\ns_add_u32 s64, s64, {RED}\nv_add_u32 v5, s64, v5")
            a(f"v_lshlrev_b32 v6, 3, v0\ns_lshl_b32 s64, s3, 9\ns_add_u32 s64, s64, {RED}\nv_add_u32 v7, s64, v6")
            a(f"s_lshl_b32 s64, {G}, 2\ns_add_u32 s64, s64, s3\ns_lshl_b32 s64, s64, 13\ns_lshl_b32 s66, {M}, 9\ns_add_u32 s64, s64, s66\ns_add_u32 s64, s64, {OPART}")
        def w_pv0(h):
            for ep in range(4*h, 4*h+4):
                t = 16 + 4 * (ep % 4)
                self.perm_frag(32, ep, t)
                D = 8 + 4 * (ep >> 2)
                a(f"v_mfma_f32_16x16x32_bf16 {vr(D)}, {vr(96+4*(ep&3))}, {vr(t)}, {'0' if (ep&3)==0 else vr(D)}")
        work = {}
        def at(n, f): work.setdefault(n, []).append(f)
        at(0, w_setup); at(qat, lambda: a(qload)); at(qat + d, w_qcheck); at(qat + d + 2, w_qread)
        at(qat + d + 3, lambda: sgroup([0, 1])); at(max(qat + d + 4, 11 + d), lambda: sgroup([2]))
        nm = max(qat + d + 5, 15 + d)
        at(nm, w_max); at(nm + 2, w_exp); at(nm + 3, w_exp2); at(nm + 4, w_sum); at(nm + 5, w_mask); at(nm + 6, w_ml)
        npv = max(nm + 7, 23 + d)
        at(npv, lambda: w_pv0(0)); at(npv + 1, lambda: w_pv0(1))
        assert npv + 1 <= 31
        for n in range(32):
            ld(n)
            for f in work.get(n, []): f()
        for t in range(4):
            a(f"s_waitcnt vmcnt({6-2*t})")
            if t == 3: self.stamp(4)
            for ep in range(8):
                a(f"v_perm_b32 v{32+4*ep+t}, v{64+4*(2*t+1)+(ep>>1)}, v{64+4*(2*t)+(ep>>1)}, {SELHI if ep&1 else SELLO}")
        for ep in (0, 4, 1, 5, 2, 6, 3, 7):
            D = 8 + 4 * (ep >> 2)
            a(f"v_mfma_f32_16x16x32_bf16 {vr(D)}, {vr(112+4*(ep&3))}, {vr(32+4*ep)}, {vr(D)}")
        a("ds_write_b128 v5, v[8:11]\nds_write_b128 v5, v[12:15] offset:16\ns_waitcnt lgkmcnt(0)\ns_barrier")
        end = a.newlabel("L_aend")
        a(f"s_cmp_ge_u32 s3, 4\ns_cbranch_scc1 {end}")
        for w in range(16): a(f"ds_read_b64 {vr(32+2*w,2)}, v7 offset:{w*2048}")
        a(f"v_mov_b32 v9, {TAG}\ns_waitcnt lgkmcnt(0)")
        for st in (16, 8, 4, 2):
            for i in range(0, st, 2): a(f"v_pk_add_f32 {vr(32+i,2)}, {vr(32+i,2)}, {vr(32+i+st,2)}")
        a("v_cvt_pk_bf16_f32 v8, v32, v33")
        self.st2(f"buffer_store_dwordx2 v[8:9], v6, {WS}, {{so}} offen", "s64")
        a.label(end)
        self.finish()

    def build(self):
        a = self.a
        hdr = open("cdna_kernels/" + NAME + ".s.ref").read().split("; @launch")[0]
        a.raw(hdr.rstrip("\n"))
        a.raw("; @launch grid=(256,1,1) block=(1024,1,1) lds=163840")
        a.raw('.amdgcn_target "amdgcn-amd-amdhsa--gfx950"\n.text\n.globl %s_kernel\n.p2align 8\n.type %s_kernel,@function\n%s_kernel:' % (NAME, NAME, NAME))
        if self.stamps or self.o.get("dbgspan") or self.o.get("amp"): a("s_memrealtime s[72:73]")
        a("s_cmp_ge_u32 s2, 256\ns_cbranch_scc1 L_exit")
        a("s_load_dwordx16 s[4:19], s[0:1], 0\ns_load_dwordx8 s[20:27], s[0:1], 64\ns_load_dwordx4 s[28:31], s[0:1], 96")
        a("v_lshrrev_b32 v1, 6, v0\nv_and_b32 v0, 63, v0\nv_readfirstlane_b32 s3, v1")
        a(f"s_mov_b32 {SELLO}, 0x05040100\ns_mov_b32 {SELHI}, 0x07060302\ns_mov_b32 {SC}, {hex(SCALE_BITS)}")
        self.stamp_init()
        a("s_cmp_lt_u32 s2, 128\ns_cbranch_scc1 L_n\ns_branch L_aatt")
        a.label("L_exit"); a("s_endpgm")
        self.role_aatt(); self.role_n()
        a.raw('.section .rodata,"a"\n.p2align 6\n.amdhsa_kernel %s_kernel' % NAME)
        a.raw("  .amdhsa_next_free_vgpr 128\n  .amdhsa_next_free_sgpr 100\n  .amdhsa_accum_offset 128\n  .amdhsa_group_segment_fixed_size 0\n  .amdhsa_kernarg_size 112\n  .amdhsa_user_sgpr_count 2\n  .amdhsa_user_sgpr_kernarg_segment_ptr 1\n  .amdhsa_system_sgpr_workgroup_id_x 1\n.end_amdhsa_kernel")
        return a.text()

if __name__ == "__main__":
    out = sys.argv[1]; o = {}
    for x in sys.argv[2:]:
        if x == "--stamps": o["stamps"] = True
        else:
            k, v = x.split("="); o[k] = int(v)
    open(out, "w").write(Gen(**o).build())
```
